```python
import torch

def _softmax(x, axis=-1):
    return torch.softmax(x, dim=axis)
def _gelu(x):
    return torch.nn.functional.gelu(x, approximate="tanh")
def _silu(x):
    return torch.nn.functional.silu(x)
def _sigmoid(x):
    return torch.sigmoid(x)
def _layernorm(x, axis=-1, eps=1e-5):
    m = x.mean(dim=axis, keepdim=True)
    v = x.var(dim=axis, keepdim=True, unbiased=False)
    return (x - m) / torch.sqrt(v + eps)
def _scatter_add(tgt, idx, src, axis=0):
    return tgt.clone().index_add_(axis, idx, src)
def _segment_sum(src, seg, n):
    out = torch.zeros((n,) + src.shape[1:], dtype=src.dtype)
    return out.index_add_(0, seg, src)
def _pad(x, pw):
    flat = tuple(v for pair in reversed(pw) for v in pair)
    return torch.nn.functional.pad(x, flat)

kernel_name = 'standalone__normalfloat_lut_codebook_lookup__prompt'

def setup_inputs():

    _w = (lambda a: (lambda t: t.to(torch.bfloat16) if t.is_floating_point() else t)(torch.as_tensor(a)))
    B, S, D, F = 1, 2048, 1024, 3584
    G = 64 if 64 > 0 else D
    D = (D // G) * G
    ng = D // G
    nf4 = torch.tensor([
        -1.0, -0.6961928009986877, -0.5250730514526367, -0.39491748809814453,
        -0.28444138169288635, -0.18477343022823334, -0.09105003625154495, 0.0,
        0.07958029955625534, 0.16093020141124725, 0.24611230194568634, 0.33791524171829224,
        0.44070982933044434, 0.5626170039176941, 0.7229568362236023, 1.0
    ], dtype=float)
    qw = torch.randint(0, 16, (D, F)).to(torch.int64)
    absmax = (torch.abs((lambda *s: torch.randn(*s, dtype=torch.bfloat16) * 0.05)(ng, F)) + 0.01).to(float)
    return {
        "x": _w((lambda *s: torch.randn(*s, dtype=torch.bfloat16) * 0.05)(B, S, D)),
        "qw": _w(qw),
        "codebook": _w(nf4),
        "absmax": _w(absmax),
    }

def reference(x, qw, codebook, absmax):
    B, S, D = x.shape
    ng, F = absmax.shape
    G = D // ng
    w_nf = codebook[qw]
    s = (lambda x, n, axis: torch.repeat_interleave(x, n, dim=axis))(absmax, G, axis=0)
    w = (lambda x, dt: x.to(dt))(w_nf * s, x.dtype)
    return torch.einsum("bsd,df->bsf", x, w)
```

```python
class Asm:
    def __init__(self):
        self.l = []
    def __call__(self, s=""):
        for x in s.split("\n"):
            self.l.append(x if x.endswith(":") else "    " + x.strip())
    def label(self, n):
        self.l.append(n + ":")
    def text(self):
        return "\n".join(self.l) + "\n"

def vr(a, n=1):
    return "v%d" % a if n == 1 else "v[%d:%d]" % (a, a + n - 1)
def sr(a, n=1):
    return "s%d" % a if n == 1 else "s[%d:%d]" % (a, a + n - 1)

HEADER = """.amdgcn_target "amdgcn-amd-amdhsa--gfx950"
.text
"""
def kernel_begin(name):
    return ".globl %s\n.p2align 8\n.type %s,@function\n%s:\n" % (name, name, name)
def kernel_desc(name, vgpr=256, sgpr=102, accum=None):
    if accum is None:
        accum = min(256, (vgpr + 3) // 4 * 4)
    return """.section .rodata,"a"
.p2align 6
.amdhsa_kernel %s
  .amdhsa_next_free_vgpr %d
  .amdhsa_next_free_sgpr %d
  .amdhsa_accum_offset %d
  .amdhsa_group_segment_fixed_size 0
  .amdhsa_kernarg_size 56
  .amdhsa_user_sgpr_count 2
  .amdhsa_user_sgpr_kernarg_segment_ptr 1
  .amdhsa_system_sgpr_workgroup_id_x 1
.end_amdhsa_kernel
.text
""" % (name, vgpr, sgpr, accum)

def interleave(main, fill, start=0, every=1, per=1):
    out = []
    f = list(fill)
    for i, m in enumerate(main):
        out.append(m)
        if i >= start and (i - start) % every == 0:
            for _ in range(per):
                if f:
                    out.append(f.pop(0))
    out.extend(f)
    return out
```

```python
import sys
from asmlib import *
NAME = "standalone__normalfloat_lut_codebook_lookup__prompt_kernel"
K1 = "deq_kernel"
def srd(a, d, lo, size):
    a("s_mov_b32 s%d, s%d\ns_mov_b32 s%d, s%d\ns_mov_b32 s%d, %d\ns_mov_b32 s%d, 0x20000" % (d, lo, d+1, lo+1, d+2, size, d+3))

def gen_deq(opt):
    a = Asm()
    a("s_cmp_ge_u32 s2, 256\ns_cbranch_scc1 D_end")
    a("s_load_dwordx4 s[4:7], s[0:1], 8")
    a("s_load_dwordx2 s[8:9], s[0:1], 24")
    a("s_load_dwordx2 s[10:11], s[0:1], 48")
    a("v_lshrrev_b32 v1, 5, v0")
    a("v_and_b32 v2, 31, v0")
    a("v_min_u32 v3, 27, v2")
    a("s_and_b32 s12, s2, 7")
    a("s_lshr_b32 s13, s2, 3")
    a("s_mul_i32 s14, s12, %d" % (128*14336))
    a("s_mul_i32 s15, s13, 448")
    a("s_add_u32 s14, s14, s15")
    a("s_mov_b32 s15, %d" % (8*14336))
    a("v_mul_lo_u32 v4, v1, s15")
    a("v_lshl_add_u32 v4, v3, 4, v4")
    a("v_add_u32 v4, s14, v4")
    a("v_lshrrev_b32 v5, 3, v1")
    a("s_lshl_b32 s14, s12, 1")
    a("v_add_u32 v5, s14, v5")
    a("v_mul_u32_u24 v5, 7168, v5")
    a("s_mul_i32 s14, s13, 224")
    a("v_lshl_add_u32 v5, v3, 3, v5")
    a("v_add_u32 v5, s14, v5")
    a("v_and_b32 v6, 15, v0\nv_lshlrev_b32 v6, 1, v6")
    a("s_waitcnt lgkmcnt(0)")
    srd(a, 16, 4, 14680064); srd(a, 20, 6, 32); srd(a, 24, 8, 114688); srd(a, 28, 10, 7340032)
    a("buffer_load_ushort v7, v6, s[20:23], 0 offen")
    a("buffer_load_dwordx2 v[8:9], v5, s[24:27], 0 offen")
    for kk in range(8):
        a("s_mov_b32 s14, %d" % (kk*14336))
        a("buffer_load_dwordx4 %s, v4, s[16:19], s14 offen %s" % (vr(16+4*kk, 4), opt.get("qflag", "")))
    a("v_lshrrev_b32 v14, 2, v1")
    a("v_mul_u32_u24 v14, 7, v14")
    a("v_and_b32 v15, 3, v1\nv_lshlrev_b32 v15, 8, v15")
    a("s_mul_i32 s14, s13, 229376\ns_mul_i32 s15, s12, 28672\ns_add_u32 s14, s14, s15")
    a("v_add_u32 v15, s14, v15")
    a("v_cmp_le_u32 s[32:33], 16, v3\nv_cmp_le_u32 s[34:35], 24, v3")
    for j in range(4):
        a("v_mov_b32 v48, %d" % j)
        a("v_mov_b32 v50, %d" % (4 + (j & 1)))
        a("v_cndmask_b32 v48, v48, v50, s[32:33]")
        a("v_mov_b32 v50, 6")
        a("v_cndmask_b32 v48, v48, v50, s[34:35]")
        a("v_lshlrev_b32 v50, 1, v3\nv_add_u32 v50, %d, v50" % ((j >> 1) - 32))
        a("v_cndmask_b32 v49, v3, v50, s[32:33]")
        a("v_lshlrev_b32 v50, 2, v3\nv_add_u32 v50, %d, v50" % (j - 96))
        a("v_cndmask_b32 v49, v49, v50, s[34:35]")
        a("v_add_u32 v48, v48, v14")
        a("v_and_b32 v50, 3, v48\nv_mul_u32_u24 v50, 7168, v50")
        a("v_lshrrev_b32 v48, 2, v48\nv_lshl_add_u32 v50, v48, 10, v50")
        a("v_lshl_add_u32 v50, v49, 4, v50")
        a("v_add_u32 v%d, v50, v15" % (10+j))
    a("s_waitcnt vmcnt(8)")
    a("v_lshlrev_b32 v7, 16, v7")
    a("v_lshlrev_b32 v52, 16, v8\nv_and_b32 v53, 0xffff0000, v8\nv_lshlrev_b32 v54, 16, v9\nv_and_b32 v55, 0xffff0000, v9")
    for kk in range(8):
        a("s_waitcnt vmcnt(%d)" % (7-kk))
        for j in range(4): a("v_lshlrev_b32 v%d, 2, v%d" % (16+4*kk+j, 16+4*kk+j))
        for j in range(4): a("ds_bpermute_b32 v%d, v%d, v7" % (16+4*kk+j, 16+4*kk+j))
    a("v_cmp_gt_u32 vcc, 28, v2")
    for kp in range(4):
        a("s_waitcnt lgkmcnt(%d)" % min(15, 24-8*kp))
        for j in range(4):
            a("v_mul_f32 v%d, v%d, v%d" % (16+8*kp+j, 16+8*kp+j, 52+j))
            a("v_mul_f32 v%d, v%d, v%d" % (20+8*kp+j, 20+8*kp+j, 52+j))
        for j in range(4):
            a("v_cvt_pk_bf16_f32 v%d, v%d, v%d" % (56+4*j+kp, 16+8*kp+j, 20+8*kp+j))
    a("s_and_saveexec_b64 s[36:37], vcc")
    for j in range(4):
        a("buffer_store_dwordx4 %s, v%d, s[28:31], 0 offen %s" % (vr(56+4*j, 4), 10+j, opt.get("wflag", "")))
    a.label("D_end")
    a("s_endpgm")
    return kernel_begin(K1) + a.text() + desc(K1, 72, 40)

def desc(n, v, s):
    return kernel_desc(n, v, s).replace(".end_amdhsa_kernel", "  .amdhsa_float_denorm_mode_32 3\n.end_amdhsa_kernel")

def gen_gemm(opt):
    a = Asm()
    a("s_cmp_ge_u32 s2, 256\ns_cbranch_scc1 L_end")
    a("s_load_dwordx2 s[4:5], s[0:1], 0")
    a("s_load_dwordx2 s[6:7], s[0:1], 32")
    a("s_load_dwordx2 s[8:9], s[0:1], 48")
    a("v_lshrrev_b32 v1, 6, v0\ns_nop 0\nv_readfirstlane_b32 s3, v1")
    a("v_and_b32 v0, 63, v0")
    a("s_and_b32 s10, s2, 7\ns_lshr_b32 s11, s2, 3")
    a("s_and_b32 s12, s10, 1\ns_lshl_b32 s12, s12, 2\ns_and_b32 s13, s11, 3\ns_add_u32 s12, s12, s13")
    a("s_lshr_b32 s13, s10, 1\ns_lshl_b32 s13, s13, 3\ns_lshr_b32 s14, s11, 2\ns_add_u32 s13, s13, s14")
    a("s_and_b32 s15, s3, 3")
    a("s_lshl_b32 s28, s12, 8\ns_lshl_b32 s29, s15, 6\ns_add_u32 s28, s28, s29")
    a("v_lshrrev_b32 v11, 4, v0")
    a("s_cmp_ge_u32 s3, 4\ns_cbranch_scc0 L_cons")
    a("v_lshrrev_b32 v10, 3, v0\nv_add_u32 v10, s28, v10\nv_lshlrev_b32 v10, 11, v10")
    a("v_and_b32 v12, 7, v0")
    for j in range(8):
        a("v_add_u32 v13, %d, v11" % (4*j))
        a("v_and_b32 v13, 7, v13\nv_xor_b32 v13, v13, v12\nv_lshl_add_u32 v13, v13, 4, v10")
        a("v_add_u32 v%d, %d, v13" % (2+j, j*16384 - (j % 4)*1024))
    a("s_mul_i32 s29, s13, 229376\ns_mul_i32 s30, s15, 7168\ns_add_u32 s29, s29, s30")
    a("v_lshlrev_b32 v15, 4, v0\nv_add_u32 v15, s29, v15")
    a("s_lshl_b32 s31, s15, 13")
    a("s_add_u32 s30, s30, 98304")
    a("s_waitcnt lgkmcnt(0)")
    srd(a, 16, 4, 4194304); srd(a, 24, 8, 7340032)
    def G(s):
        a("s_mov_b32 s34, %d" % (s*128))
        for j in range(8):
            if j % 4 == 0: a("s_add_u32 m0, s31, %d\ns_nop 0" % ((s % 3)*32768 + j*1024))
            a("buffer_load_dwordx4 v%d, s[16:19], s34 offen offset:%d lds" % (2+j, (j % 4)*1024))
        a("s_add_u32 m0, s30, %d" % (((s//2) % 2)*28672 + (s % 2)*4096))
        a("s_mov_b32 s35, %d" % ((s//2)*28672 + (s % 2)*4096))
        for j in range(4 - s % 2):
            a("buffer_load_dwordx4 v15, s[24:27], s35 offen offset:%d lds" % (j*1024))
    cnt = lambda s: (12 - s % 2) if s <= 15 else 0
    G(0); G(1); G(2)
    a("s_waitcnt vmcnt(%d)" % (cnt(1)+cnt(2)))
    a("s_barrier")
    for s in range(15):
        a("s_waitcnt vmcnt(%d)" % cnt(s+2))
        a("s_barrier")
        if s+3 <= 15: G(s+3)
    a("s_endpgm")
    a.label("L_cons")
    ACC = 20; X0 = 132; W0 = 164
    a("v_and_b32 v13, 15, v0\nv_lshrrev_b32 v17, 1, v13\nv_xor_b32 v17, v17, v11\nv_lshlrev_b32 v17, 4, v17")
    a("v_lshl_add_u32 v16, v13, 7, v17")
    a("s_lshl_b32 s29, s15, 13\nv_add_u32 v16, s29, v16")
    a("v_xor_b32 v17, 64, v16")
    a("v_add_u32 v14, 0x10000, v16\nv_add_u32 v15, 0x10000, v17")
    a("v_lshlrev_b32 v18, 4, v0\nv_add_u32 v18, 98304, v18")
    a("v_lshlrev_b32 v10, 2, v11\nv_add_u32 v10, s28, v10\nv_mul_u32_u24 v10, 7168, v10")
    a("s_mul_i32 s29, s13, 224\nv_add_u32 v10, s29, v10")
    a("v_lshl_add_u32 v2, v13, 3, v10")
    a("v_lshl_add_u32 v3, v13, 2, v10")
    a("v_lshl_add_u32 v4, v13, 1, v10")
    for i in range(112): a("v_mov_b32 v%d, 0" % (ACC+i))
    a("s_waitcnt lgkmcnt(0)")
    srd(a, 20, 6, 14680064)
    def reads(s, ks):
        f = []
        slot = s % 3
        xa = (16+ks) if slot < 2 else (14+ks)
        for i in range(4):
            f.append("ds_read_b128 %s, v%d offset:%d" % (vr(X0+16*ks+4*i,4), xa, (slot % 2 if slot < 2 else 0)*32768 + i*2048))
        for t in range(7):
            b = 7*(2*(s % 2)+ks) + t
            f.append("ds_read_b128 %s, v18 offset:%d" % (vr(W0+28*ks+4*t,4), ((s//2) % 2)*28672 + (b % 4)*7168 + (b//4)*1024))
        return [f[4]] + f[0:4] + f[5:]
    def mf(ks):
        m = []
        for t in range(7):
            for i in range(4):
                d = ACC + 4*(4*t+i)
                m.append("v_mfma_f32_16x16x32_bf16 %s, %s, %s, %s" % (vr(d,4), vr(X0+16*ks+4*i,4), vr(W0+28*ks+4*t,4), vr(d,4)))
        return m
    a("s_barrier")
    for x in reads(0, 0): a(x)
    a("s_waitcnt lgkmcnt(0)")
    for s in range(16):
        for x in interleave(mf(0), reads(s, 1)): a(x)
        a("s_waitcnt lgkmcnt(0)")
        if s < 15:
            a("s_barrier")
            for x in interleave(mf(1), reads(s+1, 0)): a(x)
            a("s_waitcnt lgkmcnt(0)")
        else:
            for x in mf(1): a(x)
    a("s_nop 7")
    oflag = opt.get("oflag", "")
    n = 0
    for i in range(4):
        for e in range(4):
            T = 132 + 4*(n % 8); n += 1
            acc = lambda t: ACC + 4*(4*t+i) + e
            a("s_mov_b32 s34, %d" % ((16*i+e)*7168))
            a("v_cvt_pk_bf16_f32 v%d, v%d, v%d" % (T, acc(0), acc(1)))
            a("v_cvt_pk_bf16_f32 v%d, v%d, v%d" % (T+1, acc(2), acc(3)))
            a("v_cvt_pk_bf16_f32 v%d, v%d, v%d" % (T+2, acc(4), acc(5)))
            a("v_cvt_pk_bf16_f32 v%d, v%d, v%d" % (T+3, acc(6), acc(6)))
            a("buffer_store_dwordx2 %s, v2, s[20:23], s34 offen %s" % (vr(T,2), oflag))
            a("buffer_store_dword v%d, v3, s[20:23], s34 offen offset:128 %s" % (T+2, oflag))
            a("buffer_store_short v%d, v4, s[20:23], s34 offen offset:192 %s" % (T+3, oflag))
    a.label("L_end")
    a("s_endpgm")
    return kernel_begin(NAME) + a.text() + desc(NAME, 224, 40)

def gen(opt={}):
    h = "; @launch kernel=%s grid=(256,1,1) block=(512,1,1) lds=0\n; @launch kernel=%s grid=(256,1,1) block=(512,1,1) lds=155648\n" % (K1, NAME)
    return h + HEADER + gen_deq(opt) + gen_gemm(opt)
if __name__ == "__main__":
    open("g2k_base.s", "w").write(gen())
    open("g2k_nt.s", "w").write(gen(dict(oflag="nt", qflag="nt")))
    open("g2k_sc1.s", "w").write(gen(dict(oflag="sc0 sc1", wflag="sc0 sc1", qflag="nt")))
```

```python
import sys
from asmlib import *
NAME = "standalone__normalfloat_lut_codebook_lookup__prompt_kernel"
K1 = "deq_kernel"
def srd(a, d, lo, size):
    a("s_mov_b32 s%d, s%d\ns_mov_b32 s%d, s%d\ns_mov_b32 s%d, %d\ns_mov_b32 s%d, 0x20000" % (d, lo, d+1, lo+1, d+2, size, d+3))

def stamp(a, n):
    a("s_memrealtime s[%d:%d]" % (60+2*n, 61+2*n))
def dump(a, nst, base, dbgoff, lab):
    a("s_load_dwordx2 s[90:91], s[0:1], 40")
    a("s_waitcnt lgkmcnt(0)")
    if dbgoff: a("s_sub_u32 s90, s90, %d\ns_subb_u32 s91, s91, 0" % dbgoff)
    a("v_readfirstlane_b32 s92, v249")
    a("s_nop 3")
    a("s_cmp_lg_u32 s92, 0\ns_cbranch_scc1 %s" % lab)
    a("s_mov_b32 s93, %d" % (base*4))
    a("s_cmp_eq_u32 s2, 0\ns_cbranch_scc1 %s_go" % lab)
    a("s_mov_b32 s93, %d" % ((base+nst)*4))
    a("s_cmp_lg_u32 s2, 255\ns_cbranch_scc1 %s" % lab)
    a.label(lab + "_go")
    a("s_mov_b64 exec, 1")
    for i in range(nst):
        a("v_mov_b32 v250, s%d\nv_mov_b32 v251, s93" % (60+2*i))
        a("global_store_dword v251, v250, s[90:91] offset:%d" % (4*i))
    a.label(lab)

def gen_deq(opt):
    a = Asm()
    a("s_cmp_ge_u32 s2, 256\ns_cbranch_scc1 D_end")
    if opt.get("stamp"): stamp(a, 0); a("v_mov_b32 v249, v0")
    a("s_load_dwordx4 s[4:7], s[0:1], 8")
    a("s_load_dwordx2 s[8:9], s[0:1], 24")
    a("s_load_dwordx2 s[10:11], s[0:1], 48")
    a("v_lshrrev_b32 v1, 5, v0")
    a("v_and_b32 v2, 31, v0")
    a("v_min_u32 v3, 27, v2")
    a("s_and_b32 s12, s2, 7")
    a("s_lshr_b32 s13, s2, 3")
    a("s_mul_i32 s14, s12, %d" % (128*14336))
    a("s_mul_i32 s15, s13, 448")
    a("s_add_u32 s14, s14, s15")
    a("s_mov_b32 s15, %d" % (8*14336))
    a("v_mul_lo_u32 v4, v1, s15")
    a("v_lshl_add_u32 v4, v3, 4, v4")
    a("v_add_u32 v4, s14, v4")
    a("v_lshrrev_b32 v5, 3, v1")
    a("s_lshl_b32 s14, s12, 1")
    a("v_add_u32 v5, s14, v5")
    a("v_mul_u32_u24 v5, 7168, v5")
    a("s_mul_i32 s14, s13, 224")
    a("v_lshl_add_u32 v5, v3, 3, v5")
    a("v_add_u32 v5, s14, v5")
    a("v_and_b32 v6, 15, v0\nv_lshlrev_b32 v6, 1, v6")
    a("s_waitcnt lgkmcnt(0)")
    srd(a, 16, 4, 14680064); srd(a, 20, 6, 32); srd(a, 24, 8, 114688); srd(a, 28, 10, 7340032)
    a("buffer_load_ushort v7, v6, s[20:23], 0 offen")
    a("buffer_load_dwordx2 v[8:9], v5, s[24:27], 0 offen")
    for kk in range(8):
        a("s_mov_b32 s14, %d" % (kk*14336))
        a("buffer_load_dwordx4 %s, v4, s[16:19], s14 offen %s" % (vr(16+4*kk, 4), opt.get("qflag", "")))
    a("v_lshrrev_b32 v14, 2, v1")
    a("v_mul_u32_u24 v14, 7, v14")
    a("v_and_b32 v15, 3, v1\nv_lshlrev_b32 v15, 8, v15")
    a("s_mul_i32 s14, s13, 229376\ns_mul_i32 s15, s12, 28672\ns_add_u32 s14, s14, s15")
    a("v_add_u32 v15, s14, v15")
    a("v_cmp_le_u32 s[32:33], 16, v3\nv_cmp_le_u32 s[34:35], 24, v3")
    for j in range(4):
        a("v_mov_b32 v48, %d" % j)
        a("v_mov_b32 v50, %d" % (4 + (j & 1)))
        a("v_cndmask_b32 v48, v48, v50, s[32:33]")
        a("v_mov_b32 v50, 6")
        a("v_cndmask_b32 v48, v48, v50, s[34:35]")
        a("v_lshlrev_b32 v50, 1, v3\nv_add_u32 v50, %d, v50" % ((j >> 1) - 32))
        a("v_cndmask_b32 v49, v3, v50, s[32:33]")
        a("v_lshlrev_b32 v50, 2, v3\nv_add_u32 v50, %d, v50" % (j - 96))
        a("v_cndmask_b32 v49, v49, v50, s[34:35]")
        a("v_add_u32 v48, v48, v14")
        a("v_and_b32 v50, 3, v48\nv_mul_u32_u24 v50, 7168, v50")
        a("v_lshrrev_b32 v48, 2, v48\nv_lshl_add_u32 v50, v48, 10, v50")
        a("v_lshl_add_u32 v50, v49, 4, v50")
        a("v_add_u32 v%d, v50, v15" % (10+j))
    a("s_waitcnt vmcnt(8)")
    a("v_lshlrev_b32 v7, 16, v7")
    a("v_lshlrev_b32 v52, 16, v8\nv_and_b32 v53, 0xffff0000, v8\nv_lshlrev_b32 v54, 16, v9\nv_and_b32 v55, 0xffff0000, v9")
    for kk in range(8):
        a("s_waitcnt vmcnt(%d)" % (7-kk))
        for j in range(4): a("v_lshlrev_b32 v%d, 2, v%d" % (16+4*kk+j, 16+4*kk+j))
        for j in range(4): a("ds_bpermute_b32 v%d, v%d, v7" % (16+4*kk+j, 16+4*kk+j))
    a("v_cmp_gt_u32 vcc, 28, v2")
    for kp in range(4):
        a("s_waitcnt lgkmcnt(%d)" % min(15, 24-8*kp))
        for j in range(4):
            a("v_mul_f32 v%d, v%d, v%d" % (16+8*kp+j, 16+8*kp+j, 52+j))
            a("v_mul_f32 v%d, v%d, v%d" % (20+8*kp+j, 20+8*kp+j, 52+j))
        for j in range(4):
            a("v_cvt_pk_bf16_f32 v%d, v%d, v%d" % (56+4*j+kp, 16+8*kp+j, 20+8*kp+j))
    a("s_and_saveexec_b64 s[36:37], vcc")
    for j in range(4):
        a("buffer_store_dwordx4 %s, v%d, s[28:31], 0 offen %s" % (vr(56+4*j, 4), 10+j, opt.get("wflag", "")))
    if opt.get("stamp"):
        stamp(a, 1)
        a("s_waitcnt vmcnt(0)")
        stamp(a, 2)
        dump(a, 3, 0, 0, "D_dump")
    a.label("D_end")
    a("s_endpgm")
    return kernel_begin(K1) + a.text() + (desc(K1, 256, 102) if opt.get("stamp") else desc(K1, 72, 40))

def desc(n, v, s):
    return kernel_desc(n, v, s).replace(".end_amdhsa_kernel", "  .amdhsa_float_denorm_mode_32 3\n.end_amdhsa_kernel")

def gen_gemm(opt):
    a = Asm()
    a("s_cmp_ge_u32 s2, 256\ns_cbranch_scc1 L_end")
    DO = opt.get("dbgoff", 0)
    if opt.get("stamp"): stamp(a, 0); a("v_mov_b32 v249, v0")
    a("s_load_dwordx2 s[4:5], s[0:1], 0")
    a("s_load_dwordx2 s[6:7], s[0:1], 32")
    a("s_load_dwordx2 s[8:9], s[0:1], 48")
    a("v_lshrrev_b32 v1, 6, v0\ns_nop 0\nv_readfirstlane_b32 s3, v1")
    a("v_and_b32 v0, 63, v0")
    a("s_and_b32 s10, s2, 7\ns_lshr_b32 s11, s2, 3")
    a("s_and_b32 s12, s10, 1\ns_lshl_b32 s12, s12, 2\ns_and_b32 s13, s11, 3\ns_add_u32 s12, s12, s13")
    a("s_lshr_b32 s13, s10, 1\ns_lshl_b32 s13, s13, 3\ns_lshr_b32 s14, s11, 2\ns_add_u32 s13, s13, s14")
    a("s_and_b32 s15, s3, 3")
    a("s_lshl_b32 s28, s12, 8\ns_lshl_b32 s29, s15, 6\ns_add_u32 s28, s28, s29")
    a("v_lshrrev_b32 v11, 4, v0")
    a("s_cmp_ge_u32 s3, 4\ns_cbranch_scc0 L_cons")
    a("v_lshrrev_b32 v10, 3, v0\nv_add_u32 v10, s28, v10\nv_lshlrev_b32 v10, 11, v10")
    a("v_and_b32 v12, 7, v0")
    for j in range(8):
        a("v_add_u32 v13, %d, v11" % (4*j))
        a("v_and_b32 v13, 7, v13\nv_xor_b32 v13, v13, v12\nv_lshl_add_u32 v13, v13, 4, v10")
        a("v_add_u32 v%d, %d, v13" % (2+j, j*16384 - (j % 4)*1024))
    a("s_mul_i32 s29, s13, 229376\ns_mul_i32 s30, s15, 7168\ns_add_u32 s29, s29, s30")
    a("v_lshlrev_b32 v15, 4, v0\nv_add_u32 v15, s29, v15")
    a("s_lshl_b32 s31, s15, 13")
    a("s_add_u32 s30, s30, 98304")
    a("s_waitcnt lgkmcnt(0)")
    srd(a, 16, 4, 4194304); srd(a, 24, 8, 7340032)
    def G(s):
        a("s_mov_b32 s34, %d" % (s*128))
        for j in range(8):
            if j % 4 == 0: a("s_add_u32 m0, s31, %d\ns_nop 0" % ((s % 3)*32768 + j*1024))
            a("buffer_load_dwordx4 v%d, s[16:19], s34 offen offset:%d lds" % (2+j, (j % 4)*1024))
        a("s_add_u32 m0, s30, %d" % (((s//2) % 2)*28672 + (s % 2)*4096))
        a("s_mov_b32 s35, %d" % ((s//2)*28672 + (s % 2)*4096))
        for j in range(4 - s % 2):
            a("buffer_load_dwordx4 v15, s[24:27], s35 offen offset:%d lds" % (j*1024))
    cnt = lambda s: (12 - s % 2) if s <= 15 else 0
    G(0); G(1); G(2)
    a("s_waitcnt vmcnt(%d)" % (cnt(1)+cnt(2)))
    a("s_barrier")
    for s in range(15):
        a("s_waitcnt vmcnt(%d)" % cnt(s+2))
        a("s_barrier")
        if s+3 <= 15: G(s+3)
    a("s_endpgm")
    a.label("L_cons")
    ACC = 20; X0 = 132; W0 = 164
    a("v_and_b32 v13, 15, v0\nv_lshrrev_b32 v17, 1, v13\nv_xor_b32 v17, v17, v11\nv_lshlrev_b32 v17, 4, v17")
    a("v_lshl_add_u32 v16, v13, 7, v17")
    a("s_lshl_b32 s29, s15, 13\nv_add_u32 v16, s29, v16")
    a("v_xor_b32 v17, 64, v16")
    a("v_add_u32 v14, 0x10000, v16\nv_add_u32 v15, 0x10000, v17")
    a("v_lshlrev_b32 v18, 4, v0\nv_add_u32 v18, 98304, v18")
    a("v_lshlrev_b32 v10, 2, v11\nv_add_u32 v10, s28, v10\nv_mul_u32_u24 v10, 7168, v10")
    a("s_mul_i32 s29, s13, 224\nv_add_u32 v10, s29, v10")
    a("v_lshl_add_u32 v2, v13, 3, v10")
    a("v_lshl_add_u32 v3, v13, 2, v10")
    a("v_lshl_add_u32 v4, v13, 1, v10")
    for i in range(112): a("v_mov_b32 v%d, 0" % (ACC+i))
    a("s_waitcnt lgkmcnt(0)")
    srd(a, 20, 6, 14680064)
    def reads(s, ks):
        f = []
        slot = s % 3
        xa = (16+ks) if slot < 2 else (14+ks)
        for i in range(4):
            f.append("ds_read_b128 %s, v%d offset:%d" % (vr(X0+16*ks+4*i,4), xa, (slot % 2 if slot < 2 else 0)*32768 + i*2048))
        for t in range(7):
            b = 7*(2*(s % 2)+ks) + t
            f.append("ds_read_b128 %s, v18 offset:%d" % (vr(W0+28*ks+4*t,4), ((s//2) % 2)*28672 + (b % 4)*7168 + (b//4)*1024))
        return [f[4]] + f[0:4] + f[5:]
    def mf(ks):
        m = []
        for t in range(7):
            for i in range(4):
                d = ACC + 4*(4*t+i)
                m.append("v_mfma_f32_16x16x32_bf16 %s, %s, %s, %s" % (vr(d,4), vr(X0+16*ks+4*i,4), vr(W0+28*ks+4*t,4), vr(d,4)))
        return m
    a("s_barrier")
    if opt.get("stamp"): stamp(a, 1)
    for x in reads(0, 0): a(x)
    a("s_waitcnt lgkmcnt(0)")
    for s in range(16):
        for x in interleave(mf(0), reads(s, 1)): a(x)
        a("s_waitcnt lgkmcnt(0)")
        if s < 15:
            a("s_barrier")
            for x in interleave(mf(1), reads(s+1, 0)): a(x)
            a("s_waitcnt lgkmcnt(0)")
        else:
            for x in mf(1): a(x)
    a("s_nop 7")
    if opt.get("stamp"): stamp(a, 2)
    oflag = opt.get("oflag", "")
    n = 0
    for i in range(4):
        for e in range(4):
            T = 132 + 4*(n % 8); n += 1
            acc = lambda t: ACC + 4*(4*t+i) + e
            a("s_mov_b32 s34, %d" % ((16*i+e)*7168))
            a("v_cvt_pk_bf16_f32 v%d, v%d, v%d" % (T, acc(0), acc(1)))
            a("v_cvt_pk_bf16_f32 v%d, v%d, v%d" % (T+1, acc(2), acc(3)))
            a("v_cvt_pk_bf16_f32 v%d, v%d, v%d" % (T+2, acc(4), acc(5)))
            a("v_cvt_pk_bf16_f32 v%d, v%d, v%d" % (T+3, acc(6), acc(6)))
            a("buffer_store_dwordx2 %s, v2, s[20:23], s34 offen %s" % (vr(T,2), oflag))
            a("buffer_store_dword v%d, v3, s[20:23], s34 offen offset:128 %s" % (T+2, oflag))
            a("buffer_store_short v%d, v4, s[20:23], s34 offen offset:192 %s" % (T+3, oflag))
    if opt.get("stamp"):
        stamp(a, 3)
        a("s_waitcnt vmcnt(0)")
        stamp(a, 4)
        dump(a, 5, 6, DO, "L_dump")
    a.label("L_end")
    a("s_endpgm")
    return kernel_begin(NAME) + a.text() + (desc(NAME, 256, 102) if opt.get("stamp") else desc(NAME, 224, 40))

def gen(opt={}):
    h = "; @launch kernel=%s grid=(256,1,1) block=(512,1,1) lds=0\n; @launch kernel=%s grid=(256,1,1) block=(512,1,1) lds=155648\n" % (K1, NAME)
    return h + HEADER + gen_deq(opt) + gen_gemm(opt)
if __name__ == "__main__":
    open("g2k_base.s", "w").write(gen())
    open("g2k_st0.s", "w").write(gen(dict(stamp=1)))
    open("g2k_st1.s", "w").write(gen(dict(stamp=1, dbgoff=512)))
    open("g2k_nt.s", "w").write(gen(dict(oflag="nt", qflag="nt")))
    open("g2k_sc1.s", "w").write(gen(dict(oflag="sc0 sc1", wflag="sc0 sc1", qflag="nt")))
```

```python
import sys
from asmlib import *
NAME = "standalone__normalfloat_lut_codebook_lookup__prompt_kernel"
K1 = "deq_kernel"
def srd(a, d, lo, size):
    a("s_mov_b32 s%d, s%d\ns_mov_b32 s%d, s%d\ns_mov_b32 s%d, %d\ns_mov_b32 s%d, 0x20000" % (d, lo, d+1, lo+1, d+2, size, d+3))

def stamp(a, n):
    a("s_memrealtime s[%d:%d]" % (60+2*n, 61+2*n))
def dump(a, nst, base, dbgoff, lab):
    a("s_load_dwordx2 s[90:91], s[0:1], %d" % (48 if dbgoff == "ws" else 40))
    a("s_waitcnt lgkmcnt(0)")
    if dbgoff == "ws": a("s_add_u32 s90, s90, 0x800000\ns_addc_u32 s91, s91, 0")
    elif dbgoff: a("s_sub_u32 s90, s90, %d\ns_subb_u32 s91, s91, 0" % dbgoff)
    a("v_readfirstlane_b32 s92, v249")
    a("s_nop 3")
    a("s_cmp_lg_u32 s92, 0\ns_cbranch_scc1 %s" % lab)
    a("s_mov_b32 s93, %d" % (base*4))
    a("s_cmp_eq_u32 s2, 0\ns_cbranch_scc1 %s_go" % lab)
    a("s_mov_b32 s93, %d" % ((base+nst)*4))
    a("s_cmp_lg_u32 s2, 255\ns_cbranch_scc1 %s" % lab)
    a.label(lab + "_go")
    a("s_mov_b64 exec, 1")
    for i in range(nst):
        a("v_mov_b32 v250, s%d\nv_mov_b32 v251, s93" % (60+2*i))
        a("global_store_dword v251, v250, s[90:91] offset:%d" % (4*i))
    a.label(lab)

def gen_deq(opt):
    a = Asm()
    a("s_cmp_ge_u32 s2, 256\ns_cbranch_scc1 D_end")
    if opt.get("stamp"): stamp(a, 0); a("v_mov_b32 v249, v0")
    a("s_load_dwordx4 s[4:7], s[0:1], 8")
    a("s_load_dwordx2 s[8:9], s[0:1], 24")
    a("s_load_dwordx2 s[10:11], s[0:1], 48")
    a("v_lshrrev_b32 v1, 5, v0")
    a("v_and_b32 v2, 31, v0")
    a("v_min_u32 v3, 27, v2")
    a("s_and_b32 s12, s2, 7")
    a("s_lshr_b32 s13, s2, 3")
    a("s_mul_i32 s14, s12, %d" % (128*14336))
    a("s_mul_i32 s15, s13, 448")
    a("s_add_u32 s14, s14, s15")
    a("s_mov_b32 s15, %d" % (8*14336))
    a("v_mul_lo_u32 v4, v1, s15")
    a("v_lshl_add_u32 v4, v3, 4, v4")
    a("v_add_u32 v4, s14, v4")
    a("v_lshrrev_b32 v5, 3, v1")
    a("s_lshl_b32 s14, s12, 1")
    a("v_add_u32 v5, s14, v5")
    a("v_mul_u32_u24 v5, 7168, v5")
    a("s_mul_i32 s14, s13, 224")
    a("v_lshl_add_u32 v5, v3, 3, v5")
    a("v_add_u32 v5, s14, v5")
    a("v_and_b32 v6, 15, v0\nv_lshlrev_b32 v6, 1, v6")
    a("s_waitcnt lgkmcnt(0)")
    srd(a, 16, 4, 14680064); srd(a, 20, 6, 32); srd(a, 24, 8, 114688); srd(a, 28, 10, 7340032)
    a("buffer_load_ushort v7, v6, s[20:23], 0 offen")
    a("buffer_load_dwordx2 v[8:9], v5, s[24:27], 0 offen")
    for kk in range(8):
        a("s_mov_b32 s14, %d" % (kk*14336))
        a("buffer_load_dwordx4 %s, v4, s[16:19], s14 offen %s" % (vr(16+4*kk, 4), opt.get("qflag", "")))
    a("v_lshrrev_b32 v14, 2, v1")
    a("v_mul_u32_u24 v14, 7, v14")
    a("v_and_b32 v15, 3, v1\nv_lshlrev_b32 v15, 8, v15")
    a("s_mul_i32 s14, s13, 229376\ns_mul_i32 s15, s12, 28672\ns_add_u32 s14, s14, s15")
    a("v_add_u32 v15, s14, v15")
    a("v_cmp_le_u32 s[32:33], 16, v3\nv_cmp_le_u32 s[34:35], 24, v3")
    for j in range(4):
        a("v_mov_b32 v48, %d" % j)
        a("v_mov_b32 v50, %d" % (4 + (j & 1)))
        a("v_cndmask_b32 v48, v48, v50, s[32:33]")
        a("v_mov_b32 v50, 6")
        a("v_cndmask_b32 v48, v48, v50, s[34:35]")
        a("v_lshlrev_b32 v50, 1, v3\nv_add_u32 v50, %d, v50" % ((j >> 1) - 32))
        a("v_cndmask_b32 v49, v3, v50, s[32:33]")
        a("v_lshlrev_b32 v50, 2, v3\nv_add_u32 v50, %d, v50" % (j - 96))
        a("v_cndmask_b32 v49, v49, v50, s[34:35]")
        a("v_add_u32 v48, v48, v14")
        a("v_and_b32 v50, 3, v48\nv_mul_u32_u24 v50, 7168, v50")
        a("v_lshrrev_b32 v48, 2, v48\nv_lshl_add_u32 v50, v48, 10, v50")
        a("v_lshl_add_u32 v50, v49, 4, v50")
        a("v_add_u32 v%d, v50, v15" % (10+j))
    a("s_waitcnt vmcnt(8)")
    a("v_lshlrev_b32 v7, 16, v7")
    a("v_lshlrev_b32 v52, 16, v8\nv_and_b32 v53, 0xffff0000, v8\nv_lshlrev_b32 v54, 16, v9\nv_and_b32 v55, 0xffff0000, v9")
    for kk in range(8):
        a("s_waitcnt vmcnt(%d)" % (7-kk))
        for j in range(4): a("v_lshlrev_b32 v%d, 2, v%d" % (16+4*kk+j, 16+4*kk+j))
        for j in range(4): a("ds_bpermute_b32 v%d, v%d, v7" % (16+4*kk+j, 16+4*kk+j))
    a("v_cmp_gt_u32 vcc, 28, v2")
    for kp in range(4):
        a("s_waitcnt lgkmcnt(%d)" % min(15, 24-8*kp))
        for j in range(4):
            a("v_mul_f32 v%d, v%d, v%d" % (16+8*kp+j, 16+8*kp+j, 52+j))
            a("v_mul_f32 v%d, v%d, v%d" % (20+8*kp+j, 20+8*kp+j, 52+j))
        for j in range(4):
            a("v_cvt_pk_bf16_f32 v%d, v%d, v%d" % (56+4*j+kp, 16+8*kp+j, 20+8*kp+j))
    a("s_and_saveexec_b64 s[36:37], vcc")
    for j in range(4):
        a("buffer_store_dwordx4 %s, v%d, s[28:31], 0 offen %s" % (vr(56+4*j, 4), 10+j, opt.get("wflag", "")))
    if opt.get("stamp"):
        stamp(a, 1)
        a("s_waitcnt vmcnt(0)")
        stamp(a, 2)
        dump(a, 3, 0, "ws" if opt.get("dbgoff") == "ws" else 0, "D_dump")
    a.label("D_end")
    a("s_endpgm")
    return kernel_begin(K1) + a.text() + (desc(K1, 256, 102) if opt.get("stamp") else desc(K1, 72, 40))

def desc(n, v, s):
    return kernel_desc(n, v, s).replace(".end_amdhsa_kernel", "  .amdhsa_float_denorm_mode_32 3\n.end_amdhsa_kernel")

def gen_gemm(opt):
    a = Asm()
    a("s_cmp_ge_u32 s2, 256\ns_cbranch_scc1 L_end")
    DO = opt.get("dbgoff", 0)
    if opt.get("stamp"): stamp(a, 0); a("v_mov_b32 v249, v0")
    a("s_load_dwordx2 s[4:5], s[0:1], 0")
    a("s_load_dwordx2 s[6:7], s[0:1], 32")
    a("s_load_dwordx2 s[8:9], s[0:1], 48")
    a("v_lshrrev_b32 v1, 6, v0\ns_nop 0\nv_readfirstlane_b32 s3, v1")
    a("v_and_b32 v0, 63, v0")
    a("s_and_b32 s10, s2, 7\ns_lshr_b32 s11, s2, 3")
    a("s_and_b32 s12, s10, 1\ns_lshl_b32 s12, s12, 2\ns_and_b32 s13, s11, 3\ns_add_u32 s12, s12, s13")
    a("s_lshr_b32 s13, s10, 1\ns_lshl_b32 s13, s13, 3\ns_lshr_b32 s14, s11, 2\ns_add_u32 s13, s13, s14")
    a("s_and_b32 s15, s3, 3")
    a("s_lshl_b32 s28, s12, 8\ns_lshl_b32 s29, s15, 6\ns_add_u32 s28, s28, s29")
    a("v_lshrrev_b32 v11, 4, v0")
    a("s_cmp_ge_u32 s3, 4\ns_cbranch_scc0 L_cons")
    a("v_lshrrev_b32 v10, 3, v0\nv_add_u32 v10, s28, v10\nv_lshlrev_b32 v10, 11, v10")
    a("v_and_b32 v12, 7, v0")
    for j in range(8):
        a("v_add_u32 v13, %d, v11" % (4*j))
        a("v_and_b32 v13, 7, v13\nv_xor_b32 v13, v13, v12\nv_lshl_add_u32 v13, v13, 4, v10")
        a("v_add_u32 v%d, %d, v13" % (2+j, j*16384 - (j % 4)*1024))
    a("s_mul_i32 s29, s13, 229376\ns_mul_i32 s30, s15, 7168\ns_add_u32 s29, s29, s30")
    a("v_lshlrev_b32 v15, 4, v0\nv_add_u32 v15, s29, v15")
    a("s_lshl_b32 s31, s15, 13")
    a("s_add_u32 s30, s30, 98304")
    a("s_waitcnt lgkmcnt(0)")
    srd(a, 16, 4, 4194304); srd(a, 24, 8, 7340032)
    def G(s):
        a("s_mov_b32 s34, %d" % (s*128))
        for j in range(8):
            if j % 4 == 0: a("s_add_u32 m0, s31, %d\ns_nop 0" % ((s % 3)*32768 + j*1024))
            a("buffer_load_dwordx4 v%d, s[16:19], s34 offen offset:%d %s lds" % (2+j, (j % 4)*1024, opt.get("xflag", "")))
        a("s_add_u32 m0, s30, %d" % (((s//2) % 2)*28672 + (s % 2)*4096))
        a("s_mov_b32 s35, %d" % ((s//2)*28672 + (s % 2)*4096))
        for j in range(4 - s % 2):
            a("buffer_load_dwordx4 v15, s[24:27], s35 offen offset:%d %s lds" % (j*1024, opt.get("wlflag", "")))
    cnt = lambda s: (12 - s % 2) if s <= 15 else 0
    G(0); G(1); G(2)
    a("s_waitcnt vmcnt(%d)" % (cnt(1)+cnt(2)))
    a("s_barrier")
    for s in range(15):
        a("s_waitcnt vmcnt(%d)" % cnt(s+2))
        a("s_barrier")
        if s+3 <= 15: G(s+3)
    a("s_endpgm")
    a.label("L_cons")
    ACC = 20; X0 = 132; W0 = 164
    a("v_and_b32 v13, 15, v0\nv_lshrrev_b32 v17, 1, v13\nv_xor_b32 v17, v17, v11\nv_lshlrev_b32 v17, 4, v17")
    a("v_lshl_add_u32 v16, v13, 7, v17")
    a("s_lshl_b32 s29, s15, 13\nv_add_u32 v16, s29, v16")
    a("v_xor_b32 v17, 64, v16")
    a("v_add_u32 v14, 0x10000, v16\nv_add_u32 v15, 0x10000, v17")
    a("v_lshlrev_b32 v18, 4, v0\nv_add_u32 v18, 98304, v18")
    a("v_lshlrev_b32 v10, 2, v11\nv_add_u32 v10, s28, v10\nv_mul_u32_u24 v10, 7168, v10")
    a("s_mul_i32 s29, s13, 224\nv_add_u32 v10, s29, v10")
    a("v_lshl_add_u32 v2, v13, 3, v10")
    a("v_lshl_add_u32 v3, v13, 2, v10")
    a("v_lshl_add_u32 v4, v13, 1, v10")
    for i in range(112): a("v_mov_b32 v%d, 0" % (ACC+i))
    a("s_waitcnt lgkmcnt(0)")
    srd(a, 20, 6, 14680064)
    def reads(s, ks):
        f = []
        slot = s % 3
        xa = (16+ks) if slot < 2 else (14+ks)
        for i in range(4):
            f.append("ds_read_b128 %s, v%d offset:%d" % (vr(X0+16*ks+4*i,4), xa, (slot % 2 if slot < 2 else 0)*32768 + i*2048))
        for t in range(7):
            b = 7*(2*(s % 2)+ks) + t
            f.append("ds_read_b128 %s, v18 offset:%d" % (vr(W0+28*ks+4*t,4), ((s//2) % 2)*28672 + (b % 4)*7168 + (b//4)*1024))
        return [f[4]] + f[0:4] + f[5:]
    def mf(ks):
        m = []
        for t in range(7):
            for i in range(4):
                d = ACC + 4*(4*t+i)
                m.append("v_mfma_f32_16x16x32_bf16 %s, %s, %s, %s" % (vr(d,4), vr(X0+16*ks+4*i,4), vr(W0+28*ks+4*t,4), vr(d,4)))
        return m
    a("s_barrier")
    if opt.get("stamp"): stamp(a, 1)
    for x in reads(0, 0): a(x)
    a("s_waitcnt lgkmcnt(0)")
    for s in range(16):
        for x in interleave(mf(0), reads(s, 1)): a(x)
        a("s_waitcnt lgkmcnt(0)")
        if s < 15:
            a("s_barrier")
            for x in interleave(mf(1), reads(s+1, 0)): a(x)
            a("s_waitcnt lgkmcnt(0)")
        else:
            for x in mf(1): a(x)
    a("s_nop 7")
    if opt.get("stamp"): stamp(a, 2)
    oflag = opt.get("oflag", "")
    n = 0
    for i in range(4):
        for e in range(4):
            T = 132 + 4*(n % 8); n += 1
            acc = lambda t: ACC + 4*(4*t+i) + e
            a("s_mov_b32 s34, %d" % ((16*i+e)*7168))
            a("v_cvt_pk_bf16_f32 v%d, v%d, v%d" % (T, acc(0), acc(1)))
            a("v_cvt_pk_bf16_f32 v%d, v%d, v%d" % (T+1, acc(2), acc(3)))
            a("v_cvt_pk_bf16_f32 v%d, v%d, v%d" % (T+2, acc(4), acc(5)))
            a("v_cvt_pk_bf16_f32 v%d, v%d, v%d" % (T+3, acc(6), acc(6)))
            a("buffer_store_dwordx2 %s, v2, s[20:23], s34 offen %s" % (vr(T,2), oflag))
            a("buffer_store_dword v%d, v3, s[20:23], s34 offen offset:128 %s" % (T+2, oflag))
            a("buffer_store_short v%d, v4, s[20:23], s34 offen offset:192 %s" % (T+3, oflag))
    if opt.get("stamp"):
        stamp(a, 3)
        a("s_waitcnt vmcnt(0)")
        stamp(a, 4)
        dump(a, 5, 6, DO, "L_dump")
    a.label("L_end")
    a("s_endpgm")
    return kernel_begin(NAME) + a.text() + (desc(NAME, 256, 102) if opt.get("stamp") else desc(NAME, 224, 40))

def gen_spin(slot, D):
    a = Asm()
    a("s_cmp_ge_u32 s2, 1\ns_cbranch_scc1 S_end")
    a("s_load_dwordx2 s[4:5], s[0:1], 48")
    a("s_waitcnt lgkmcnt(0)")
    a("s_add_u32 s4, s4, 0x800000\ns_addc_u32 s5, s5, 0")
    a("s_load_dword s6, s[4:5], %d" % (slot*4))
    a("s_mov_b32 s10, 200000")
    a.label("S_loop")
    a("s_memrealtime s[8:9]")
    a("s_waitcnt lgkmcnt(0)")
    a("s_sub_u32 s7, s8, s6")
    a("s_cmp_ge_u32 s7, %d\ns_cbranch_scc1 S_end" % D)
    a("s_sub_u32 s10, s10, 1\ns_cmp_lg_u32 s10, 0\ns_cbranch_scc1 S_loop")
    a.label("S_end")
    a("s_endpgm")
    return kernel_begin("spin_kernel") + a.text() + kernel_desc("spin_kernel", 8, 16)

def gen_sp(slot, opt={}):
    o = dict(opt); o.update(stamp=1, dbgoff="ws")
    b = gen(o)
    l1, l2, rest = b.split("\n", 2)
    return "\n".join([l1, l2, "; @launch kernel=spin_kernel grid=(1,1,1) block=(64,1,1) lds=0", rest]) + gen_spin(slot, 5000)

def gen(opt={}):
    h = "; @launch kernel=%s grid=(256,1,1) block=(512,1,1) lds=0\n; @launch kernel=%s grid=(256,1,1) block=(512,1,1) lds=155648\n" % (K1, NAME)
    return h + HEADER + gen_deq(opt) + gen_gemm(opt)
if __name__ == "__main__":
    open("g2k_base.s", "w").write(gen())
    open("g2k_st0.s", "w").write(gen(dict(stamp=1)))
    open("g2k_st1.s", "w").write(gen(dict(stamp=1, dbgoff=512)))
    for sl in (0, 2, 6, 7, 8, 10): open("g2k_sp%d.s" % sl, "w").write(gen_sp(sl))
    open("g2k_qnt.s", "w").write(gen(dict(qflag="nt")))
    open("g2k_xnt.s", "w").write(gen(dict(xflag="nt")))
    open("g2k_ont.s", "w").write(gen(dict(oflag="nt")))
    open("g2k_wnt.s", "w").write(gen(dict(wflag="nt")))
    open("g2k_wsc.s", "w").write(gen(dict(wflag="sc0 sc1")))
    open("g2k_wlnt.s", "w").write(gen(dict(wlflag="nt")))
    open("g2k_nt.s", "w").write(gen(dict(oflag="nt", qflag="nt")))
    open("g2k_sc1.s", "w").write(gen(dict(oflag="sc0 sc1", wflag="sc0 sc1", qflag="nt")))
```

```python
import gen2k
from asmlib import *
def gen_store(flag, nld, wait=False):
    a = Asm()
    a("s_cmp_ge_u32 s2, 256\ns_cbranch_scc1 P_end")
    a("s_load_dwordx2 s[8:9], s[0:1], 48")
    a("s_waitcnt lgkmcnt(0)")
    a("s_mov_b32 s20, s8\ns_mov_b32 s21, s9\ns_mov_b32 s22, 0x10000000\ns_mov_b32 s23, 0x20000")
    a("s_mul_i32 s29, s2, %d\ns_add_u32 s29, s29, 0x2000000\nv_lshlrev_b32 v2, 4, v0\nv_add_u32 v2, s29, v2" % (8192*nld))
    for i in range(4): a("v_mul_u32_u24 v%d, %d, v2" % (4+i, 12345+77*i))
    for i in range(nld):
        a("s_mov_b32 s34, %d" % (i*8192))
        a("buffer_store_dwordx4 v[4:7], v2, s[20:23], s34 offen %s" % flag)
    a.label("P_end")
    a("s_endpgm")
    return kernel_begin("store_kernel") + a.text() + kernel_desc("store_kernel", 64, 60)
def mk(name, flag, nld):
    b = gen2k.gen()
    l1, l2, rest = b.split("\n", 2)
    open(name, "w").write("\n".join([l1, l2, "; @launch kernel=store_kernel grid=(256,1,1) block=(512,1,1) lds=0", rest]) + gen_store(flag, nld))
mk("ps_0.s", "", 0); mk("ps_plain.s", "", 7); mk("ps_sc1.s", "sc1", 7); mk("ps_nt.s", "nt", 7); mk("ps_sc01.s", "sc0 sc1", 7); mk("ps_plain14.s", "", 14)
```

```python
import sys
from asmlib import *
NAME = "standalone__normalfloat_lut_codebook_lookup__prompt_kernel"
RB = 8192; SLOT = 49152; WOFF = 32768; AMOFF = 1024
LDS = RB + 3*SLOT
QROW = 14336
def srd(a, d, lo, size):
    a("s_mov_b32 s%d, s%d\ns_mov_b32 s%d, s%d\ns_mov_b32 s%d, %d\ns_mov_b32 s%d, 0x20000" % (d, lo, d+1, lo+1, d+2, size, d+3))

def gen(opt={}):
    D = opt.get("D", 16)
    stamps = opt.get("stamps", False)
    oflag = opt.get("oflag", "sc1")
    qflag = opt.get("qflag", "")
    xflag = opt.get("xflag", "")
    a = Asm()
    a("s_cmp_ge_u32 s2, 256\ns_cbranch_scc1 L_end")
    if stamps: a("s_memrealtime s[60:61]")
    a("s_load_dwordx8 s[4:11], s[0:1], 0")
    a("s_load_dwordx2 s[12:13], s[0:1], 32")
    a("s_load_dwordx2 s[14:15], s[0:1], 48")
    a("v_lshrrev_b32 v1, 6, v0\nv_and_b32 v0, 63, v0\nv_readfirstlane_b32 s3, v1")
    a("s_and_b32 s44, s2, 7\ns_lshr_b32 s45, s2, 3")
    a("s_and_b32 s40, s44, 1\ns_lshl_b32 s40, s40, 2\ns_and_b32 s46, s45, 3\ns_add_u32 s40, s40, s46")
    a("s_lshr_b32 s41, s44, 1\ns_lshl_b32 s41, s41, 3\ns_lshr_b32 s46, s45, 2\ns_add_u32 s41, s41, s46")
    a("s_and_b32 s42, s41, 1")
    a("s_lshr_b32 s47, s41, 1")
    a("s_and_b32 s43, s3, 3")
    a("s_lshl_b32 s44, s40, 8\ns_lshl_b32 s45, s43, 6\ns_add_u32 s44, s44, s45")
    a("v_lshrrev_b32 v1, 4, v0")
    a("s_cmp_ge_u32 s3, 4\ns_cbranch_scc0 L_cons")
    VX = 2
    VQ0 = 10; VQT = 11; VWW = 12
    VSC = 15
    VS = 16
    VO = 24
    VL = 40
    QB = [72, 104, 136]
    VT = 170
    a("v_and_b32 v%d, 31, v0" % VT)
    a("s_lshl_b32 s45, s42, 7")
    a("v_lshlrev_b32 v%d, 4, v%d\nv_add_u32 v%d, s45, v%d\nv_and_b32 v%d, 511, v%d" % (VT+1, VT, VT+1, VT+1, VT+1, VT+1))
    a("v_lshrrev_b32 v%d, 5, v0" % (VT+2))
    a("s_lshl_b32 s45, s43, 1\nv_add_u32 v%d, s45, v%d" % (VT+3, VT+2))
    a("v_mul_u32_u24 v%d, %d, v%d" % (VT+3, 8*QROW, VT+3))
    a("s_mul_i32 s45, s47, 896\ns_mul_i32 s46, s42, 384\ns_add_u32 s45, s45, s46")
    a("v_add3_u32 v%d, v%d, v%d, s45" % (VQ0, VT+1, VT+3))
    for kk in range(1, 8): a("s_mov_b32 s%d, %d" % (48+kk, kk*QROW))
    a("v_and_b32 v%d, 15, v0\nv_lshlrev_b32 v%d, 4, v%d" % (VT+4, VT+4, VT+4))
    a("s_lshl_b32 s45, s42, 6\nv_add_u32 v%d, s45, v%d\nv_and_b32 v%d, 255, v%d" % (VT+4, VT+4, VT+4, VT+4))
    a("s_lshl_b32 s45, s43, 2\nv_add_u32 v%d, s45, v1\nv_mul_u32_u24 v%d, 7168, v%d" % (VT+5, VT+5, VT+5))
    a("s_mul_i32 s45, s47, 448\ns_mul_i32 s46, s42, 192\ns_add_u32 s45, s45, s46")
    a("v_add3_u32 v%d, v%d, v%d, s45" % (VT+4, VT+4, VT+5))
    a("v_and_b32 v%d, 15, v0\nv_lshlrev_b32 v%d, 1, v%d" % (VT+6, VT+6, VT+6))
    a("s_waitcnt lgkmcnt(0)")
    srd(a, 24, 6, 14680064); srd(a, 28, 10, 114688); srd(a, 32, 8, 32); srd(a, 20, 4, 4194304)
    a("s_lshl_b32 s45, s43, 10\ns_add_u32 m0, s45, %d" % AMOFF)
    a("buffer_load_ushort v%d, v%d, s[32:35], 0 offen" % (VT+7, VT+6))
    a("buffer_load_dwordx4 v%d, s[28:31], 0 offen lds" % (VT+4))
    def qloads(s, buf):
        L = []
        if s == 0: va = VQ0
        else:
            L.append("v_add_u32 v%d, %d, v%d" % (VQT, s*64*QROW, VQ0)); va = VQT
        for kk in range(8):
            L.append("buffer_load_dwordx4 %s, v%d, s[24:27], %s offen %s" % (vr(QB[buf]+4*kk, 4), va, "s%d" % (48+kk) if kk else "0", qflag))
        return L
    for x in qloads(0, 0): a(x)
    a("v_lshrrev_b32 v%d, 3, v0" % (VT+8))
    a("s_lshl_b32 s45, s42, 5")
    a("v_and_b32 v%d, 7, v0" % (VT+9))
    for j in range(8):
        a("v_add_u32 v%d, %d, v%d\nv_xor_b32 v%d, s45, v%d\nv_add_u32 v%d, s44, v%d\nv_lshlrev_b32 v%d, 11, v%d" % (VT+10, 8*j, VT+8, VT+10, VT+10, VT+10, VT+10, VT+10, VT+10))
        a("v_add_u32 v%d, %d, v1\nv_and_b32 v%d, 7, v%d\nv_xor_b32 v%d, v%d, v%d" % (VT+11, 4*j, VT+11, VT+11, VT+11, VT+11, VT+9))
        a("v_lshl_add_u32 v%d, v%d, 4, v%d" % (VT+10, VT+11, VT+10))
        a("v_add_u32 v%d, %d, v%d" % (VX+j, 3072 - (j % 4)*1024, VT+10))
    a("s_sub_u32 s20, s20, 3072\ns_subb_u32 s21, s21, 0\ns_mov_b32 s22, %d" % (4194304+3072))
    a("s_lshl_b32 s46, s43, 13\ns_add_u32 s46, s46, %d" % RB)
    def xdma(s):
        L = ["s_mov_b32 s56, %d" % (s*128)]
        for j in range(8):
            if j % 4 == 0: L.append("s_add_u32 m0, s46, %d\ns_nop 0" % ((s % 3)*SLOT + j*1024))
            L.append("buffer_load_dwordx4 v%d, s[20:23], s56 offen offset:%d %s lds" % (VX+j, (j % 4)*1024, xflag))
        return L
    for x in xdma(0): a(x)
    for x in qloads(1, 1): a(x)
    for x in xdma(1): a(x)
    for x in qloads(2, 2): a(x)
    for x in xdma(2): a(x)
    a("v_lshrrev_b32 v%d, 3, v%d\nv_lshlrev_b32 v%d, 10, v%d" % (VT+3, VT, VT+3, VT+3))
    a("v_and_b32 v%d, 7, v%d\nv_lshl_add_u32 v%d, v%d, 4, v%d" % (VT+5, VT, VT+3, VT+5, VT+3))
    a("v_lshl_add_u32 v%d, v%d, 8, v%d" % (VT+3, VT+2, VT+3))
    a("s_lshl_b32 s45, s43, 12\nv_add_u32 v%d, s45, v%d" % (VT+3, VT+3))
    for sg in range(3): a("v_add_u32 v%d, %d, v%d" % (VWW+sg, RB + sg*SLOT + WOFF, VT+3))
    a("v_lshlrev_b32 v%d, 3, v%d" % (VSC, VT))
    a("s_waitcnt vmcnt(48)")
    a("v_lshlrev_b32 v%d, 16, v%d\nv_lshlrev_b32 v%d, 1, v%d" % (VT+7, VT+7, VT+6, VT+6))
    a("ds_write_b32 v%d, v%d" % (VT+6, VT+7))
    a("s_waitcnt lgkmcnt(0)")
    a("s_barrier")
    def deq(s, buf):
        Q = QB[buf]
        L = []
        L.append("ds_read_b64 %s, v%d offset:%d" % (vr(VS+4, 2), VSC, AMOFF + s*256))
        def lut(kp):
            r = []
            for c in range(8): r.append("v_lshlrev_b32 v%d, 2, v%d" % (Q+8*kp+c, Q+8*kp+c))
            for c in range(8): r.append("ds_read_b32 v%d, v%d" % (VL+8*kp+c, Q+8*kp+c))
            return r
        def fin(kp):
            r = []
            for c in range(8): r.append("v_mul_f32 v%d, v%d, v%d" % (VL+8*kp+c, VL+8*kp+c, VS+(c % 4)))
            for j in range(4): r.append("v_cvt_pk_bf16_f32 v%d, v%d, v%d" % (VO+4*j+kp, VL+8*kp+j, VL+8*kp+4+j))
            return r
        L += lut(0)
        L += ["s_waitcnt lgkmcnt(8)"]
        L += ["v_lshlrev_b32 v%d, 16, v%d" % (VS, VS+4), "v_and_b32 v%d, 0xffff0000, v%d" % (VS+1, VS+4),
              "v_lshlrev_b32 v%d, 16, v%d" % (VS+2, VS+5), "v_and_b32 v%d, 0xffff0000, v%d" % (VS+3, VS+5)]
        L += lut(1) + ["s_waitcnt lgkmcnt(8)"] + fin(0)
        L += lut(2) + ["s_waitcnt lgkmcnt(8)"] + fin(1)
        L += lut(3) + ["s_waitcnt lgkmcnt(8)"] + fin(2)
        L += ["s_waitcnt lgkmcnt(0)"] + fin(3)
        return L
    def wwrite(s):
        return ["ds_write_b128 v%d, %s offset:%d" % (VWW + s % 3, vr(VO+4*j, 4), (j & 1)*512 + (j >> 1)*128) for j in range(4)]
    nst = [0]
    def stamp():
        if stamps:
            a("s_memrealtime s[62:63]\ns_waitcnt lgkmcnt(0)\nv_writelane_b32 v200, s62, %d" % nst[0]); nst[0] += 1
    if stamps:
        a("v_mov_b32 v200, 0\ns_nop 1\nv_writelane_b32 v200, s60, 0"); nst[0] = 1
    stamp()
    a("s_waitcnt vmcnt(40)")
    for x in deq(0, 0) + wwrite(0): a(x)
    a("s_waitcnt vmcnt(32) lgkmcnt(0)")
    a("s_barrier")
    stamp()
    for s in range(-1, 14):
        mem = []
        if 0 <= s and s+3 <= 15: mem += xdma(s+3)
        nx = 8 if (0 <= s and s+3 <= 15) else 0
        nq = 0
        if s+4 <= 15: mem += qloads(s+4, (s+4) % 3); nq = 8
        if s == -1: n0 = 24
        elif s == 0: n0 = 8 + 8
        else: n0 = (8 if s+2 <= 15 else 0) + (8 if s+3 <= 15 else 0)
        a("s_waitcnt vmcnt(%d)" % n0)
        body = deq(s+2, (s+2) % 3)
        step = max(1, (len(body)-8)//max(1, len(mem)))
        for x in interleave(body, mem, 0, step, 1) + wwrite(s+2): a(x)
        if s == -1: n1 = 16 + nq
        elif s == 0: n1 = 8 + nx + nq
        else: n1 = (8 if s+3 <= 15 else 0) + nx + nq
        a("s_waitcnt vmcnt(%d) lgkmcnt(0)" % n1)
        a("s_barrier")
        stamp()
    if stamps:
        a("s_cmp_lg_u32 s3, 4\ns_cbranch_scc1 L_end")
        srd(a, 36, 14, 0x10000000)
        a("s_lshl_b32 s45, s2, 9\ns_add_u32 s45, s45, 0x8000000\nv_lshlrev_b32 v1, 2, v0\nv_add_u32 v1, s45, v1")
        a("buffer_store_dword v200, v1, s[36:39], 0 offen")
    a("s_endpgm")
    a.label("L_cons")
    VXA = 2
    VWA = 8
    VOA = 11
    ACC = 16; X0 = 128; W0 = 160
    a("v_and_b32 v13, 15, v0")
    a("v_lshrrev_b32 v14, 1, v13\nv_xor_b32 v14, v14, v1\nv_lshlrev_b32 v14, 4, v14\nv_lshl_add_u32 v14, v13, 7, v14")
    a("s_lshl_b32 s45, s43, 13\nv_add_u32 v14, s45, v14\nv_xor_b32 v15, 64, v14")
    for sg in range(3):
        a("v_add_u32 v%d, %d, v14\nv_add_u32 v%d, %d, v15" % (VXA+2*sg, RB+sg*SLOT, VXA+2*sg+1, RB+sg*SLOT))
    a("v_lshrrev_b32 v14, 1, v13\nv_and_b32 v15, 1, v13\nv_lshl_add_u32 v14, v15, 3, v14\nv_lshlrev_b32 v14, 4, v14")
    a("v_and_b32 v15, 1, v1\nv_lshl_add_u32 v14, v15, 8, v14\nv_lshrrev_b32 v15, 1, v1\nv_lshl_add_u32 v14, v15, 12, v14")
    for sg in range(3): a("v_add_u32 v%d, %d, v14" % (VWA+sg, RB+sg*SLOT+WOFF))
    a("v_lshlrev_b32 v14, 2, v1\nv_add_u32 v14, s44, v14\nv_mul_u32_u24 v14, 7168, v14\nv_lshl_add_u32 v14, v13, 2, v14")
    a("s_mul_i32 s45, s47, 448\nv_add_u32 v14, s45, v14\nv_add_u32 v%d, 192, v14" % (VOA+1))
    a("s_lshl_b32 s45, s42, 8\nv_add_u32 v%d, s45, v14" % VOA)
    a("s_mul_i32 s48, s42, %d\ns_sub_u32 s49, %d, s48" % (32*7168, 32*7168))
    accr = {}
    n = 0
    for t in range(8):
        for i in range(4 if t < 6 else 2):
            accr[(t, i)] = ACC + 4*n; n += 1
    for i in range(112): a("v_mov_b32 v%d, 0" % (ACC+i))
    a("s_waitcnt lgkmcnt(0)")
    srd(a, 32, 12, 14680064)
    def reads(s, ks):
        sg = s % 3
        fx = ["ds_read_b128 %s, v%d offset:%d" % (vr(X0+16*ks+4*i, 4), VXA+2*sg+ks, i*2048) for i in range(4)]
        fw = ["ds_read_b128 %s, v%d offset:%d" % (vr(W0+32*ks+4*t, 4), VWA+sg, ks*8192 + t*512) for t in range(8)]
        return [fw[0]] + fx + fw[1:]
    def mf(ks):
        m = []
        for t in range(8):
            ii = list(range(4 if t < 6 else 2))
            if t % 2: ii.reverse()
            for i in ii:
                d = accr[(t, i)]
                m.append("v_mfma_f32_16x16x32_bf16 %s, %s, %s, %s" % (vr(d, 4), vr(X0+16*ks+4*i, 4), vr(W0+32*ks+4*t, 4), vr(d, 4)))
        return m
    a("s_barrier")
    a("s_barrier")
    for x in reads(0, 0): a(x)
    a("s_waitcnt lgkmcnt(0)")
    for s in range(16):
        for x in interleave(mf(0), reads(s, 1)): a(x)
        a("s_waitcnt lgkmcnt(0)")
        if s < 15:
            a("s_barrier")
            for x in interleave(mf(1), reads(s+1, 0)): a(x)
            a("s_waitcnt lgkmcnt(0)")
        else:
            for x in mf(1): a(x)
    if stamps: a("s_memrealtime s[62:63]")
    a("s_nop 7")
    n = 0
    for i in range(4):
        for e in range(4):
            T = X0 + 4*(n % 8); n += 1
            a("s_add_u32 s45, s%d, %d" % (48 + (i >> 1), (16*(i & 1)+e)*7168))
            for g in range(4 if i < 2 else 3):
                a("v_cvt_pk_bf16_f32 v%d, v%d, v%d" % (T+g, accr[(2*g, i)]+e, accr[(2*g+1, i)]+e))
            for g in range(3):
                a("buffer_store_dword v%d, v%d, s[32:35], s45 offen offset:%d %s" % (T+g, VOA, 64*g, oflag))
            if i < 2: a("buffer_store_dword v%d, v%d, s[32:35], s45 offen %s" % (T+3, VOA+1, oflag))
    if stamps:
        a("s_memrealtime s[64:65]\ns_waitcnt vmcnt(0)\ns_memrealtime s[66:67]\ns_waitcnt lgkmcnt(0)")
        a("s_cmp_lg_u32 s3, 0\ns_cbranch_scc1 L_end")
        srd(a, 36, 14, 0x10000000)
        a("v_mov_b32 v2, s62\nv_mov_b32 v3, s64\nv_mov_b32 v4, s66\nv_mov_b32 v5, s60")
        a("s_lshl_b32 s45, s2, 9\ns_add_u32 s45, s45, 0x8000100\nv_mov_b32 v1, s45")
        a("s_mov_b64 exec, 1")
        a("buffer_store_dwordx4 v[2:5], v1, s[36:39], 0 offen")
    a.label("L_end")
    a("s_endpgm")
    d = kernel_desc(NAME, 224, 72).replace(".end_amdhsa_kernel", "  .amdhsa_float_denorm_mode_32 3\n.end_amdhsa_kernel")
    return "; @launch grid=(256,1,1) block=(512,1,1) lds=%d\n" % LDS + HEADER + kernel_begin(NAME) + a.text() + d
if __name__ == "__main__":
    open("f1.s", "w").write(gen())
    open("f1_st.s", "w").write(gen(dict(stamps=True)))
    open("f1_plain.s", "w").write(gen(dict(oflag="")))
    open("f1_qnt.s", "w").write(gen(dict(qflag="nt")))
```

```python
import sys
from asmlib import *
NAME = "standalone__normalfloat_lut_codebook_lookup__prompt_kernel"
RB = 1024; XS = 32768; WB = RB + 3*XS; WS = 16384; LDS = WB + 3*WS
QROW = 14336
FL = 0x800000
WSZ = 0x804000
JOFF = [(j & 1)*512 + (j >> 1)*128 for j in range(4)]
def srd(a, d, lo, size):
    a("s_mov_b32 s%d, s%d\ns_mov_b32 s%d, s%d\ns_mov_b32 s%d, %d\ns_mov_b32 s%d, 0x20000" % (d, lo, d+1, lo+1, d+2, size, d+3))
class VM:
    def __init__(self, a): self.a = a; self.q = []
    def add(self, tag, n=1): self.q += [tag]*n
    def wait(self, *tags, extra=""):
        last = max([i for i, t in enumerate(self.q) if t in tags], default=-1)
        if last < 0:
            if extra: self.a("s_waitcnt %s" % extra)
            return
        n = len(self.q) - 1 - last
        assert n <= 63, n
        self.a("s_waitcnt vmcnt(%d) %s" % (n, extra))
        self.q = self.q[last+1:]
def _lut(Q, kp): return ["v_lshlrev_b32 v%d, 2, v%d" % (Q+8*kp+c, Q+8*kp+c) for c in range(8)] + ["ds_read_b32 v%d, v%d" % (Q+8*kp+c, Q+8*kp+c) for c in range(8)]
def _sc(SR, VS): return ["v_lshlrev_b32 v%d, 16, v%d" % (VS, SR), "v_and_b32 v%d, 0xffff0000, v%d" % (VS+1, SR),
                         "v_lshlrev_b32 v%d, 16, v%d" % (VS+2, SR+1), "v_and_b32 v%d, 0xffff0000, v%d" % (VS+3, SR+1)]
def _fin(Q, VS, kp, o): return (["v_mul_f32 v%d, v%d, v%d" % (Q+8*kp+c, Q+8*kp+c, VS+(c % 4)) for c in range(8)]
                                + ["v_cvt_pk_bf16_f32 v%d, v%d, v%d" % (o(j), Q+8*kp+j, Q+8*kp+4+j) for j in range(4)])
PT = 256
def deq2(Q, SR, VS, VO):
    def lut(kp):
        r = []
        for j in range(4): r += ["v_lshlrev_b32 v%d, 3, v%d" % (Q+8*kp+j, Q+8*kp+j)]
        for j in range(4): r += ["v_lshl_add_u32 v%d, v%d, 7, v%d" % (Q+8*kp+4+j, Q+8*kp+4+j, Q+8*kp+j)]
        for j in range(4): r += ["ds_read_b64 %s, v%d offset:%d" % (vr(Q+8*kp+2*j, 2), Q+8*kp+4+j, PT)]
        return r
    def fin(kp):
        r = ["v_mul_f32 v%d, v%d, v%d" % (Q+8*kp+c, Q+8*kp+c, VS+(c >> 1)) for c in range(8)]
        r += ["v_cvt_pk_bf16_f32 v%d, v%d, v%d" % (VO+4*j+kp, Q+8*kp+2*j, Q+8*kp+2*j+1) for j in range(4)]
        return r
    return (lut(0) + lut(1) + _sc(SR, VS) + lut(2) + lut(3) + ["s_waitcnt lgkmcnt(12)"] + fin(0) + ["s_waitcnt lgkmcnt(8)"] + fin(1)
            + ["s_waitcnt lgkmcnt(4)"] + fin(2) + ["s_waitcnt lgkmcnt(0)"] + fin(3))
def deq1(Q, SR, VS, VO):
    f = lambda kp: _fin(Q, VS, kp, lambda j: VO+4*j+kp)
    return (_lut(Q, 0) + _sc(SR, VS) + _lut(Q, 1) + ["s_waitcnt lgkmcnt(8)"] + f(0) + _lut(Q, 2) + ["s_waitcnt lgkmcnt(8)"] + f(1)
            + _lut(Q, 3) + ["s_waitcnt lgkmcnt(8)"] + f(2) + ["s_waitcnt lgkmcnt(0)"] + f(3))
def deqh(Q, SR, VS, VO):
    f = lambda kp: _fin(Q, VS, kp, lambda j: VO + 4*(j & 1) + 2*(j >> 1) + kp)
    sw = ["v_permlane32_swap_b32 v%d, v%d" % (VO+4*u+p, VO+4*u+2+p) for p in range(2) for u in range(2)]
    return _lut(Q, 0) + _lut(Q, 1) + _sc(SR, VS) + ["s_waitcnt lgkmcnt(8)"] + f(0) + ["s_waitcnt lgkmcnt(0)"] + f(1) + sw

def gen(opt={}):
    global RB, WB, LDS
    pair = opt.get("pair", False)
    RB = 4096 if pair else 1024; WB = RB + 3*XS; LDS = WB + 3*WS
    deq = deq2 if pair else deq1
    stamps = opt.get("stamps", False)
    npoll = opt.get("npoll", 40)
    split = opt.get("split", 0)
    cw2 = opt.get("cw2", 0)
    sp = opt.get("sp", [0, 1, 2, 3])
    e3 = opt.get("e3", 0)
    stash = opt.get("stash")
    a = Asm()
    VQ = 10; VA = 11; VW = 12; VTAB = 13; VL4 = 14
    a("s_cmp_ge_u32 s2, 256\ns_cbranch_scc1 L_end")
    ds = opt.get("dsrd", True)
    if ds:
        a("s_load_dwordx2 s[24:25], s[0:1], 8\ns_load_dwordx2 s[28:29], s[0:1], 24\ns_load_dwordx2 s[32:33], s[0:1], 16\ns_load_dwordx2 s[20:21], s[0:1], 0")
        a("s_load_dwordx4 s[12:15], s[0:1], 32\ns_load_dwordx2 s[36:37], s[0:1], 48")
    else:
        a("s_load_dwordx8 s[4:11], s[0:1], 0")
        a("s_load_dwordx4 s[12:15], s[0:1], 32")
        a("s_load_dwordx2 s[16:17], s[0:1], 48")
    a("s_memrealtime s[60:61]")
    a("v_lshrrev_b32 v1, 6, v0\nv_and_b32 v0, 63, v0\nv_readfirstlane_b32 s3, v1")
    epf = opt.get("epf", True)
    if epf:
        a.label("L_pc")
        a("s_getpc_b64 s[18:19]\ns_sub_u32 s18, s18, L_pc+4-%s\ns_subb_u32 s19, s19, 0" % NAME)
        pfs = opt.get("pfs", 0)
        if pfs:
            a("s_cmp_lg_u32 s3, 4\ns_cbranch_scc1 L_npf")
            a("s_bfe_u32 s45, s2, 0x%x\ns_lshl_b32 s45, s45, 7\nv_lshlrev_b32 v2, %d, v0\nv_add_u32 v2, s45, v2" % ((pfs << 16) | 3, 7+pfs))
            a("v_cmp_gt_u32 vcc, L_last-%s-4, v2\ns_and_saveexec_b64 s[4:5], vcc" % NAME)
            a("global_load_dword v255, v2, s[18:19]\ns_mov_b64 exec, -1")
        else:
            a("s_cmp_lt_u32 s3, 4\ns_cbranch_scc1 L_npf")
            a("v_lshlrev_b32 v2, 7, v0\ns_and_b32 s45, s3, 3\ns_lshl_b32 s45, s45, 13\nv_add_u32 v2, s45, v2")
            a("v_min_u32 v2, L_last-%s-4, v2" % NAME)
            a("global_load_dword v255, v2, s[18:19]")
        a.label("L_npf")
    a("s_and_b32 s44, s2, 1\ns_lshl_b32 s44, s44, 2\ns_bfe_u32 s40, s2, 0x20003\ns_add_u32 s40, s40, s44")
    a("s_bfe_u32 s41, s2, 0x20001\ns_lshl_b32 s41, s41, 3\ns_lshr_b32 s46, s2, 5\ns_add_u32 s41, s41, s46")
    a("s_and_b32 s42, s41, 1\ns_lshr_b32 s47, s41, 1\ns_and_b32 s43, s3, 3\ns_add_u32 s58, s40, 8")
    a("v_and_b32 v3, 31, v0\nv_lshrrev_b32 v4, 5, v0")
    a("s_lshl_b32 s45, s42, 7\nv_lshl_add_u32 v5, v3, 4, s45\nv_and_b32 v5, 511, v5")
    a("s_mul_i32 s46, s47, 896\ns_mul_i32 s57, s42, 384\ns_add_u32 s46, s46, s57")
    a("v_add_u32 v5, s46, v5\nv_lshrrev_b32 v%d, 1, v5" % VA)
    a("s_lshl_b32 s45, s43, 1\nv_add_u32 v6, s45, v4\nv_mul_u32_u24 v6, %d, v6\nv_add_u32 v%d, v5, v6" % (8*QROW, VQ))
    a("v_and_b32 v6, 15, v0\nv_lshlrev_b32 v6, 1, v6")
    if ds:
        for d, sz in ((24, 14680064), (28, 114688), (32, 32), (20, 4194304), (36, WSZ)): a("s_mov_b32 s%d, %d\ns_mov_b32 s%d, 0x20000" % (d+2, sz, d+3))
    a("s_mul_i32 s59, s40, 7168\ns_mul_i32 s56, s40, %d" % (64*QROW))
    a("s_cmp_ge_u32 s3, 4\ns_cbranch_scc1 L_prod")
    def tload(vm, sreg, Q, SR, tag):
        if sreg: a("s_mul_i32 s59, %s, 7168\ns_mul_i32 s56, %s, %d" % (sreg, sreg, 64*QROW))
        for kk in range(8):
            if kk: a("s_add_u32 s56, s56, %d" % QROW)
            a("buffer_load_dwordx4 %s, v%d, s[24:27], s56 offen" % (vr(Q+4*kk, 4), VQ))
        a("buffer_load_dwordx2 %s, v%d, s[28:31], s59 offen" % (vr(SR, 2), VA))
        if vm: vm.add(tag, 9)
    def hsetup(VQH, odd):
        a("s_mul_i32 s45, s43, %d\ns_add_u32 s45, s45, %d\nv_mul_u32_u24 v%d, %d, v4\nv_add3_u32 v%d, v%d, v5, s45" % (16*QROW, 8*QROW*odd, VQH, 4*QROW, VQH, VQH))
    def hload(vm, VQH, Q, SR, tag):
        a("s_mul_i32 s45, s58, 7168\ns_mul_i32 s56, s58, %d" % (64*QROW))
        a("buffer_load_dwordx2 %s, v%d, s[28:31], s45 offen" % (vr(SR, 2), VA))
        for kk in range(4):
            if kk: a("s_add_u32 s56, s56, %d" % QROW)
            a("buffer_load_dwordx4 %s, v%d, s[24:27], s56 offen" % (vr(Q+4*kk, 4), VQH))
        vm.add(tag, 5)
    def setup_pub(VP, VZ, sreg, lin=False, VWH=None, odd=0):
        a("v_lshrrev_b32 v7, 3, v3\nv_lshlrev_b32 v7, 10, v7\nv_and_b32 v8, 7, v3\nv_lshl_add_u32 v7, v8, 4, v7\nv_lshl_add_u32 v%d, v4, 8, v7" % VW)
        a("v_lshlrev_b32 v%d, 1, v6" % VL4)
        a("s_lshl_b32 s45, s41, 4\ns_add_u32 s45, s45, %s\ns_lshl_b32 s45, s45, 2\ns_add_u32 s45, s45, s43\ns_lshl_b32 s45, s45, 12" % sreg)
        if lin: a("v_lshlrev_b32 v%d, 4, v0\nv_add_u32 v%d, s45, v%d" % (VP, VP, VP))
        else: a("v_add_u32 v%d, s45, v%d" % (VP, VW))
        a("s_lshl_b32 s45, s41, 2\ns_add_u32 s45, s45, s43\ns_lshl_b32 s45, s45, 7\ns_add_u32 s45, s45, %d\ns_add_u32 s54, s36, s45\ns_addc_u32 s55, s37, 0" % FL)
        a("s_lshl_b32 s45, %s, 3\nv_mov_b32 v%d, s45\nv_mov_b32 v%d, 0" % (sreg, VZ+1, VZ))
        a("s_lshl_b32 s45, s43, 12\ns_add_u32 s57, s45, %d\nv_add_u32 v%d, s57, v%d" % (WB, VW, VW))
        if VWH: a("s_add_u32 s45, s57, %d\nv_lshl_add_u32 v%d, v4, 7, v7\nv_add_u32 v%d, s45, v%d" % (WS + 256*odd, VWH, VWH, VWH))
    def wlocal(slot, VO):
        for j in range(4): a("ds_write_b128 v%d, %s offset:%d" % (VW, vr(VO+4*j, 4), slot*WS + JOFF[j]))
    def flag(vm, VN, VF):
        a("s_mov_b64 exec, 1\nglobal_store_dwordx2 v%d, %s, s[54:55] sc1\ns_mov_b64 exec, -1" % (VF, vr(VN, 2)))
        vm.add("f")
    def ldnonce(vm, VN, VZ):
        a("global_load_dwordx2 %s, v%d, s[14:15] sc1" % (vr(VN, 2), VZ)); vm.add("n")
    def getnonce(vm, lab, VN, VZ, *tags):
        vm.wait("n", *tags)
        a("s_mov_b32 s45, %d" % (npoll+1))
        a.label(lab)
        a("v_readfirstlane_b32 s53, v%d\nv_readfirstlane_b32 s52, v%d\ns_nop 1\ns_cmp_lg_u32 s53, 0\ns_cbranch_scc1 %s_ok" % (VN+1, VN, lab))
        if stamps: a("s_add_u32 s90, s90, 0x100")
        a("global_load_dwordx2 %s, v%d, s[14:15] sc1" % (vr(VN, 2), VZ))
        a("s_waitcnt vmcnt(0)\ns_sub_u32 s45, s45, 1\ns_cmp_lg_u32 s45, 0\ns_cbranch_scc1 %s" % lab)
        a("s_mov_b32 s52, s60\ns_or_b32 s53, s61, 0x40000000\nv_mov_b32 v%d, s52\nv_mov_b32 v%d, s53" % (VN, VN+1))
        a.label(lab + "_ok")
    def lutwrite():
        a("v_lshlrev_b32 v%d, 16, v%d\nds_write_b32 v%d, v%d" % (VTAB, VTAB, VL4, VTAB))
    vm = VM(a)
    VXA = 2; VWA = 6; VOA = 7; ACC = 16
    QA = 16; SRA = 48; VSL = 52; VOT = 56; VP = 72; VR = 73; VZ = 224; VN = 226; VTC = 228
    VQH = 230; VWH = 231; QH = 232; SRH = 248
    a("s_waitcnt lgkmcnt(0)")
    if not ds: srd(a, 28, 10, 114688); srd(a, 24, 6, 14680064); srd(a, 32, 8, 32)
    scb = opt.get("scb", False) or pair
    if scb: a("s_load_dwordx8 s[4:11], s[32:33], 0")
    tload(vm, None, QA, SRA, "a0")
    if not scb: a("buffer_load_ushort v%d, v6, s[32:35], 0 offen" % VTAB); vm.add("a0")
    a("s_or_b32 s45, s2, s3\ns_cmp_lg_u32 s45, 0\ns_cbranch_scc1 L_nowr")
    a("s_or_b32 s61, s61, 0x40000000\nv_mov_b32 v126, s60\nv_mov_b32 v127, s61\nv_mov_b32 v15, 0")
    a("s_mov_b64 exec, 1\nglobal_store_dwordx2 v15, v[126:127], s[14:15] sc1\ns_mov_b64 exec, -1")
    a.label("L_nowr")
    a("@@CUT1@@")
    cs = [76]
    def cstamp():
        if stamps: a("s_memrealtime s[%d:%d]" % (cs[0], cs[0]+1)); cs[0] += 2
    if split: hsetup(VQH, 0)
    if split == 1: hload(vm, VQH, QH, SRH, "a1")
    if not ds: srd(a, 36, 16, WSZ)
    setup_pub(VP, VZ, "s40", False, VWH if split else None, 0)
    a("s_lshl_b32 s44, s40, 8\ns_lshl_b32 s45, s43, 6\ns_add_u32 s44, s44, s45")
    a("v_lshrrev_b32 v1, 4, v0\nv_and_b32 v%d, 15, v0" % VR)
    a("v_lshrrev_b32 v15, 1, v%d\nv_xor_b32 v15, v15, v1\nv_lshlrev_b32 v15, 4, v15\nv_lshl_add_u32 v15, v%d, 7, v15" % (VR, VR))
    a("s_lshl_b32 s45, s43, 13\ns_add_u32 s45, s45, %d\nv_add_u32 v%d, s45, v15\nv_xor_b32 v%d, 64, v%d" % (RB, VXA, VXA+1, VXA))
    a("v_add_u32 v%d, 0x10000, v%d\nv_add_u32 v%d, 0x10000, v%d" % (VXA+2, VXA, VXA+3, VXA+1))
    a("v_lshrrev_b32 v15, 1, v%d\nv_and_b32 v7, 1, v%d\nv_lshl_add_u32 v15, v7, 3, v15\nv_lshlrev_b32 v15, 4, v15" % (VR, VR))
    a("v_and_b32 v7, 1, v1\nv_lshl_add_u32 v15, v7, 8, v15\nv_lshrrev_b32 v7, 1, v1\nv_lshl_add_u32 v15, v7, 12, v15")
    a("v_add_u32 v%d, %d, v15" % (VWA, WB))
    a("v_lshlrev_b32 v15, 2, v1\nv_add_u32 v15, s44, v15\nv_mul_u32_u24 v15, 7168, v15\nv_lshl_add_u32 v15, v%d, 2, v15" % VR)
    a("s_mul_i32 s45, s47, 448\nv_add_u32 v15, s45, v15\nv_add_u32 v%d, 192, v15" % (VOA+1))
    a("s_lshl_b32 s45, s42, 8\nv_add_u32 v%d, s45, v15" % VOA)
    a("s_mul_i32 s48, s42, %d\ns_sub_u32 s49, %d, s48" % (32*7168, 32*7168))
    srd(a, 32, 12, 14680064)
    if not ds: srd(a, 20, 4, 4194304)
    a("s_lshl_b32 s45, s41, 3\ns_lshl_b32 s50, s40, 8\ns_add_u32 s45, s45, s50\ns_lshl_b32 s50, s43, 1\ns_add_u32 s45, s45, s50")
    a("v_lshrrev_b32 v%d, 5, v0\nv_add_u32 v%d, s45, v%d\nv_lshlrev_b32 v%d, 11, v%d\nv_and_b32 v15, 31, v0\nv_lshl_add_u32 v%d, v15, 6, v%d" % ((VTC,)*7))
    pt = opt.get("pt", "")
    if pt:
        a("s_mov_b64 exec, 1")
        if "w" in pt: a("buffer_load_dword v74, v%d, s[36:39], 0 offen" % VP); vm.add("pt")
        if "f" in pt: a("global_load_dword v74, v%d, s[54:55]" % VZ); vm.add("pt")
        if "d" in pt: a("global_load_dword v74, v%d, s[14:15] offset:128" % VZ); vm.add("pt")
        if "o" in pt: a("buffer_load_dword v74, v%d, s[32:35], 0 offen\ns_mov_b32 s45, %d\nbuffer_load_dword v74, v%d, s[32:35], s45 offen" % (VOA, 63*7168, VOA)); vm.add("pt", 2)
        a("s_mov_b64 exec, -1")
    tp = opt.get("touch", 0)
    def touch(pos):
        if pos == tp:
            if opt.get("tmask", False):
                a("s_lshl_b32 s45, s40, 1\ns_lshl_b32 s45, 0x10001, s45\ns_cmp_eq_u32 s40, 0\ns_cselect_b32 s50, 4, 1\ns_or_b32 s45, s45, s50\ns_andn2_b32 exec_lo, 0x55555555, s45\ns_mov_b32 exec_hi, exec_lo")
            else: a("s_mov_b32 exec_lo, 0x55555555\ns_mov_b32 exec_hi, 0x55555555")
            a("buffer_load_dword v%d, v%d, s[20:23], 0 offen" % (VTC+1, VTC))
            a("s_mov_b64 exec, -1"); vm.add("t")
    if scb:
        a("s_waitcnt lgkmcnt(0)")
        for i in range(8): a("v_writelane_b32 v%d, s%d, %d" % (VTAB, 4+i, i))
        a("v_lshlrev_b32 v74, 16, v%d\nv_and_b32 v75, 0xffff0000, v%d\nv_lshlrev_b32 v76, 3, v0" % (VTAB, VTAB))
        a("s_mov_b64 exec, 0xff\nds_write_b64 v76, v[74:75]\ns_mov_b64 exec, -1")
        if pair:
            a("v_lshlrev_b32 v77, 2, v1\nds_read_b32 v74, v%d" % VL4)
            for i in range(4): a("ds_read_b32 v%d, v77 offset:%d" % (81+2*i, 16*i))
            a("s_waitcnt lgkmcnt(0)")
            for i in range(4): a("v_mov_b32 v%d, v74" % (80+2*i))
            for i in range(4): a("ds_write_b64 v76, v[%d:%d] offset:%d" % (80+2*i, 81+2*i, PT + 512*i))
    for b, when in opt.get("stub", {}).items():
        if when == -2: a("s_call_b64 s[74:75], L_stub%d" % b)
    vm.wait("a0")
    cstamp()
    if not scb: lutwrite()
    for x in deq(QA, SRA, VSL, VOT): a(x)
    for j in range(4): a("buffer_store_dwordx4 %s, v%d, s[36:39], 0 offen offset:%d sc1" % (vr(VOT+4*j, 4), VP, JOFF[j]))
    vm.add("st", 4)
    if pt: vm.wait("pt")
    wlocal(0, VOT)
    ldnonce(vm, VN, VZ)
    if split == 2: hload(vm, VQH, QH, SRH, "a1")
    if e3 == 2: a("s_xor_b32 s51, s40, 1"); tload(vm, "s51", 160, 232, "b0")
    touch(-1)
    cstamp()
    accr = {}
    n = 0
    for t in range(8):
        for i in range(4 if t < 6 else 2):
            accr[(t, i)] = ACC + 4*n; n += 1
    def epi(gs):
        L = []
        for i in range(4):
            for e in range(4):
                g2 = [g for g in gs if g < 3 or i < 2]
                if not g2: continue
                L.append("s_add_u32 s45, s%d, %d" % (48 + (i >> 1), (16*(i & 1)+e)*7168))
                for g in g2:
                    r0 = accr[(2*g, i)]+e
                    L.append("v_cvt_pk_bf16_f32 v%d, v%d, v%d" % (r0, r0, accr[(2*g+1, i)]+e))
                for g in g2:
                    r0 = accr[(2*g, i)]+e
                    if g < 3: L.append("buffer_store_dword v%d, v%d, s[32:35], s45 offen offset:%d sc1" % (r0, VOA, 64*g))
                    else: L.append("buffer_store_dword v%d, v%d, s[32:35], s45 offen sc1" % (r0, VOA+1))
        return L
    a("s_waitcnt lgkmcnt(0)")
    a("s_barrier")
    ee = opt.get("ee", [[2, 3], [0], [1]])
    TS = opt.get("TS", [6, 7, 0, 1, 2, 3, 4, 5])
    XB = lambda st: 224 if st == 15 else 128 + 32*(st % 2)
    WR = lambda n: 192 + 8*(n % 4)
    LA = 3
    groups = [(st, t) for st in range(13) for t in TS]
    p1 = opt.get("p1", [4, 5, 6, 7])
    passes = [[(st, t) for st in (13, 14, 15) for t in (p1 if p == 0 else [2*g+u for g in gs for u in (0, 1)])] for p, gs in enumerate(ee)]
    pstart = []
    for P in passes: pstart.append(len(groups)); groups += P
    bpos = {8*st + 4: st for st in range(1, 13)}
    bpos[7] = 0
    fbp = opt.get("fbp", 1)
    bpos[pstart[0] + fbp] = 13; bpos[pstart[0] + len(p1) + fbp] = 14
    g15 = opt.get("g15")
    if g15:
        groups = groups[:pstart[0]]; bpos = {k: v for k, v in bpos.items() if v < 13}; nb = 13
        for e in g15:
            if e == "B": bpos[len(groups)-1] = nb; nb += 1
            else: groups.append(e)
        assert nb == (15 if stash else 17) and sorted(groups[104:]) == sorted((st, t) for st in (13, 14, 15) for t in range(8))
    lev = lambda st, t: st if (st < 15 or not g15 or stash) else (15 if t >= 6 else 16 if t >= 4 else 17)
    lq = []
    def lwait(tags):
        last = max([i for i, t in enumerate(lq) if t in tags], default=-1)
        if last < 0: return
        a("s_waitcnt lgkmcnt(%d)" % min(15, len(lq)-1-last))
        del lq[:last+1]
    def rW(n):
        st, t = groups[n]
        return [("W%d" % n, "ds_read_b128 %s, v%d offset:%d" % (vr(WR(n)+4*ks, 4), VWA, (st % 3)*WS + ks*8192 + t*512)) for ks in range(2)]
    def rX(st):
        sg = st % 3
        return [("X%d_%d" % (st, i), "ds_read_b128 %s, v%d offset:%d" % (vr(XB(st)+8*i+4*ks, 4), VXA+2*(sg//2)+ks, (sg % 2)*XS + i*2048)) for i in range(4) for ks in range(2)]
    done = set(); sq = []; cred = [0]; age = [99]; newest = [-1]
    pub = 0; nW = 0; xq = []; xdone = -1; flip = [0]; seen = set(); pend = []; snake = [0]
    def issue_now(L):
        for tag, ins in L: a(ins); lq.append(tag)
    def avail(n):
        nonlocal nW
        L = []
        while nW < len(groups) and nW <= n + LA and lev(*groups[nW]) <= pub:
            L += rW(nW); nW += 1
        return L
    issue_now(rW(0) + rX(0)[:4]); nW = 1; issue_now(rX(0)[4:] + avail(-1)); xdone = 0
    for n, (st, t) in enumerate(groups):
        ii = list(range(4 if t < 6 else 2))
        if snake[0]: ii.reverse()
        snake[0] ^= 1
        lwait(["W%d" % n] + ["X%d_%d" % (st, i) for i in ii])
        m = []
        for i in ii:
            d = accr[(t, i)]
            for c in ((0, 1) if not flip[0] else (1, 0)):
                first = (t, i) not in seen; seen.add((t, i))
                m.append("v_mfma_f32_16x16x32_bf16 %s, %s, %s, %s" % (vr(d, 4), vr(XB(st)+8*i+4*c, 4), vr(WR(n)+4*c, 4), "0" if first else vr(d, 4)))
            flip[0] ^= 1
        rd = avail(n)
        if xdone < pub:
            xq = rX(pub) if pub < 15 or not g15 or stash else rX(15)[:4] if pub == 15 else rX(15)[4:] if pub == 16 else []
            if stash and g15 and pub == 15 and xdone == 13: xq = rX(14) + rX(15)
            xdone = pub
        nxt_first = min([k for k in range(n+1, len(groups)) if groups[k][0] > st] + [len(groups)])
        if g15 and pub >= 15 and not stash: nxt_first = n+1
        if g15 and stash and pub >= 14 and xq: nxt_first = min(k for k in range(n+1, len(groups)) if groups[k][0] == int(xq[0][0][1:3]))
        if xq:
            left = max(1, nxt_first - n - 1)
            take = len(xq) if nxt_first - n <= 1 else min(len(xq), max(4, (len(xq) + left - 1)//left))
            rd += xq[:take]; xq = xq[take:]
        for tag, ins in rd: lq.append(tag)
        body = interleave(m, [ins for tag, ins in rd], 0, 1, 1 if len(rd) <= len(m) else 2)
        rate = opt.get("rate")
        if rate:
            out = []
            for x in body:
                out.append(x); age[0] += 1
                if x.startswith("v_mfma"):
                    cred[0] += 1
                    if sq and cred[0] >= rate and (sq[0][0] != newest[0] or age[0] >= 9):
                        out += sq.pop(0)[1]; cred[0] -= rate
                        if cred[0] > rate: cred[0] = rate
            body = out
            done.add((st, t))
            if n+1 < len(groups) and all((s_, t_) in done for s_ in (13, 14, 15) for t_ in (t & ~1, t | 1)) and st >= 13:
                L = epi([t//2]); newest[0] = t//2; age[0] = 0
                if not sq: cred[0] = rate
                sq += [(t//2, L[k:k+3]) for k in range(0, len(L), 3)]
        else:
            for p in range(1, len(passes)):
                if n == pstart[p] + 1: pend = epi(ee[p-1]); pleft = len(passes[p]) - 1
            if pend:
                take = (len(pend) + pleft - 1)//pleft; pleft -= 1
                part, pend = pend[:take], pend[take:]
                body = interleave(body, part, 0, 1, 1 if len(part) <= len(body) else 2)
        for x in body: a(x)
        if n in bpos:
            b = bpos[n]
            if b == 0:
                getnonce(vm, "L_cn", VN, VZ, "st")
                flag(vm, VN, VZ+1)
                cstamp()
                touch(0)
                for b_, when in opt.get("stub", {}).items():
                    if when == -3: a("s_call_b64 s[74:75], L_stub%d" % b_)
                if e3:
                    if e3 == 1: a("s_xor_b32 s51, s40, 1"); tload(vm, "s51", 160, 232, "b0")
                    touch(4)
                    vm.wait("b0")
                    for x in deq(160, 232, 234, 240): a(x)
                    wlocal(2, 240)
                    a("s_waitcnt lgkmcnt(0)")
                if split:
                    vm.wait("a1")
                    for x in deqh(QH, SRH, 160, 164): a(x)
                    for u in range(2): a("ds_write_b128 v%d, %s offset:%d" % (VWH, vr(164+4*u, 4), 512*u))
                    a("s_waitcnt lgkmcnt(0)")
                cstamp()
                touch(1)
                if cw2:
                    a("s_cmp_le_u32 s40, 0\ns_cselect_b32 s70, 1, 0\ns_lshl_b32 s71, s70, 3\ns_mov_b32 s72, %d\nv_mov_b32 v161, 0" % cw2)
                    a("s_lshl_b32 s45, s41, 18\ns_lshl_b32 s73, s43, 12\ns_add_u32 s45, s45, s73\nv_lshlrev_b32 v160, 4, v0\nv_add_u32 v160, s45, v160")
                    a.label("L_cpoll")
                    a("s_load_dwordx2 s[64:65], s[54:55], s71 glc\ns_waitcnt lgkmcnt(0)\ns_cmp_eq_u64 s[64:65], s[52:53]\ns_cbranch_scc1 L_cgo")
                    a("s_sub_u32 s72, s72, 1\ns_cmp_lg_u32 s72, 0\ns_cbranch_scc1 L_cpoll\ns_branch L_cno")
                    a.label("L_cgo")
                    a("s_add_u32 m0, s57, %d\ns_lshl_b32 s45, s70, 14\nv_mov_b32 v161, 1" % (2*WS))
                    for j in range(4): a("buffer_load_dwordx4 v160, s[36:39], s45 offen offset:%d sc1 lds" % (j*1024))
                    a.label("L_cno")
                    a("s_lshl_b32 s45, s43, 2\nv_mov_b32 v162, s45\nds_write_b32 v162, v161 offset:64\ns_waitcnt lgkmcnt(0)")
                touch(2)
            if b == 1 and cw2: a("s_waitcnt vmcnt(%d)" % (1 if tp == 2 else 0))
            if b == 11: a("s_waitcnt vmcnt(0)")
            if b in opt.get("al", []):
                a("s_branch L_fin%d\n.p2align 12" % b)
                if opt.get("stub"):
                    a.label("L_stub%d" % b); a("s_setpc_b64 s[74:75]\ns_nop 0")
                a.label("L_fin%d" % b)
            if lq: a("s_waitcnt lgkmcnt(0)"); del lq[:]
            a("s_barrier")
            pub = b+1
            if b == 0:
                cstamp()
                touch(3)
                W1 = avail(n); X1 = rX(1); xdone = 1
                issue_now(W1[:2] + X1 + W1[2:])
    if stamps: a("s_memrealtime s[62:63]")
    for g, L in sq:
        for x in L: a(x)
    if len(sq) < 3: a("s_nop 7")
    for x in epi([groups[-1][1]//2] if opt.get("rate") else ee[-1]): a(x)
    if stamps:
        a("s_memrealtime s[64:65]\ns_waitcnt vmcnt(0)\ns_memrealtime s[66:67]\ns_waitcnt lgkmcnt(0)")
        a("s_cmp_lg_u32 s3, 0\ns_cbranch_scc1 L_end")
        a("s_mov_b32 s38, 0x10000000")
        a("v_mov_b32 v2, s62\nv_mov_b32 v3, s64\nv_mov_b32 v4, s66\nv_mov_b32 v5, s76\nv_mov_b32 v6, s78\nv_mov_b32 v7, s80\nv_mov_b32 v8, s82\nv_mov_b32 v9, s84")
        a("s_lshl_b32 s45, s2, 9\ns_add_u32 s45, s45, 0x8000100\nv_mov_b32 v1, s45")
        a("s_mov_b64 exec, 1")
        a("buffer_store_dwordx4 v[2:5], v1, s[36:39], 0 offen")
        a("buffer_store_dwordx4 v[6:9], v1, s[36:39], 0 offen offset:16")
    a.label("L_end")
    a("s_endpgm")
    a("@@CUT2@@")
    a.label("L_prod")
    vm = VM(a)
    VX = 16; VT = 240; VWD = 15; VQH = 24; VWH = 25; VLR = 26
    QB = 32; SRB = 64; VS = 68; VO = 72; VP = 88; VZ = 90; VN = 92
    nst = [1]
    def stamp():
        if stamps:
            a("s_memrealtime s[62:63]\ns_memtime s[94:95]\ns_waitcnt lgkmcnt(0)\nv_writelane_b32 v200, s62, %d\nv_writelane_b32 v200, s94, %d" % (nst[0], 32+nst[0])); nst[0] += 1
    if not epf:
        a.label("L_pc")
        a("s_getpc_b64 s[18:19]\ns_sub_u32 s18, s18, L_pc+4-%s\ns_subb_u32 s19, s19, 0" % NAME)
        a("v_lshlrev_b32 v2, 7, v0\ns_lshl_b32 s45, s43, 13\nv_add_u32 v2, s45, v2")
        a("v_min_u32 v2, L_last-%s-4, v2" % NAME)
        a("global_load_dword v255, v2, s[18:19]")
    vm.add("pf")
    a("s_lshl_b32 s44, s40, 8\ns_lshl_b32 s45, s43, 6\ns_add_u32 s44, s44, s45")
    a("v_lshrrev_b32 v1, 4, v0")
    a("v_lshrrev_b32 v%d, 3, v0\ns_lshl_b32 s45, s42, 5\nv_xor_b32 v%d, s45, v%d\nv_add_u32 v%d, s44, v%d\nv_lshlrev_b32 v%d, 11, v%d" % ((VT,)*7))
    a("v_and_b32 v%d, 7, v0\nv_xor_b32 v%d, v%d, v1\nv_lshl_add_u32 v%d, v%d, 4, v%d" % (VT+1, VT+1, VT+1, VX, VT+1, VT))
    a("v_xor_b32 v%d, 64, v%d\nv_add_u32 v%d, %d, v%d" % (VX+1, VX, VX+1, 16384-1024, VX+1))
    for j in (2, 3): a("v_add_u32 v%d, %d, v%d" % (VX+j, 2*(16384-1024), VX+j-2))
    a("s_mul_i32 s45, s42, %d\ns_sub_u32 s45, %d, s45" % (2*65536, 65536))
    for j in range(4, 8): a("v_add_u32 v%d, s45, v%d" % (VX+j, VX+j-4))
    a("s_lshl_b32 s46, s43, 13\ns_add_u32 s46, s46, %d" % RB)
    if split: hsetup(VQH, 1)
    a("s_waitcnt lgkmcnt(0)")
    if stamps: a("v_mov_b32 v200, 0\ns_mov_b32 s90, 0\ns_nop 1\nv_writelane_b32 v200, s60, 0")
    if not ds: srd(a, 20, 4, 4194304); srd(a, 24, 6, 14680064); srd(a, 28, 10, 114688); srd(a, 32, 8, 32)
    SG = [70, 71]
    a("s_and_b32 s51, s40, 6")
    def sigma(i):
        d = "s%d" % SG[i % 2]
        if i == 0: a("s_mov_b32 %s, s40" % d)
        elif i == 1: a("s_mov_b32 %s, s58" % d)
        elif e3 and i == 2: a("s_xor_b32 %s, s40, 1" % d)
        elif e3 and i < 9: a("s_cmp_le_u32 s51, %d\ns_cselect_b32 %s, %d, %d" % (i-3, d, i-1, i-3))
        else:
            ii, base = (i-2, 0) if i < 9 else (i-9, 8)
            a("s_cmp_le_u32 s40, %d\ns_cselect_b32 %s, %d, %d" % (ii, d, base+ii+1, base+ii))
    def xdma_l(i):
        L = ["s_lshl_b32 s50, s%d, 7" % SG[i % 2]]
        for j in range(8):
            if j % 4 == 0: L.append("s_add_u32 m0, s46, %d\ns_nop 0" % ((i % 3)*XS + j*1024))
            L.append("buffer_load_dwordx4 v%d, s[20:23], s50 offen offset:%d lds" % (VX+j, (j % 4)*1024))
        return L
    def xdma(i):
        for x in xdma_l(i): a(x)
        vm.add("x%d" % i, 8)
    def fload(i):
        a("s_lshl_b32 s45, s%d, 3\ns_load_dwordx2 s[%d:%d], s[54:55], s45 glc" % (SG[i % 2], 64+2*(i % 2), 65+2*(i % 2)))
    def wdma(i, js=(0, 1, 2, 3)):
        F = 64 + 2*(i % 2)
        a("s_waitcnt lgkmcnt(0)")
        a("s_cmp_eq_u64 s[%d:%d], s[52:53]\ns_cbranch_scc1 L_rdy%d" % (F, F+1, i))
        a("s_mov_b32 s86, s%d\ns_mov_b32 s87, %d\ns_call_b64 s[74:75], L_ensure\ns_cbranch_scc0 L_skip%d" % (SG[i % 2], (i % 3)*WS, i))
        a.label("L_rdy%d" % i)
        a("s_add_u32 m0, s57, %d\ns_lshl_b32 s45, s%d, 14" % ((i % 3)*WS, SG[i % 2]))
        if len(js) < 4: a("s_mov_b32 s72, 1")
        for j in js: a("buffer_load_dwordx4 v%d, s[36:39], s45 offen offset:%d sc1 lds" % (VWD, j*1024))
        a.label("L_skip%d" % i)
        vm.add("w%d" % i, len(js))
    stamp()
    a1f = opt.get("a1f", False)
    if a1f: tload(vm, "s58", QB, SRB, "a1")
    sigma(0); xdma(0)
    if not opt.get("nocb", True): a("buffer_load_ushort v%d, v6, s[32:35], 0 offen" % VTAB); vm.add("a1")
    if not ds: srd(a, 36, 16, WSZ)
    setup_pub(VP, VZ, "s58", bool(split), VWH if split else None, 1)
    a("s_lshl_b32 s45, s41, 18\ns_lshl_b32 s50, s43, 12\ns_add_u32 s45, s45, s50\nv_lshlrev_b32 v%d, 4, v0\nv_add_u32 v%d, s57, v%d\nv_add_u32 v%d, s45, v%d" % (VWD, VLR, VWD, VWD, VWD))
    late = opt.get("late")
    if late:
        def ptouch():
            a("s_lshl_b32 s45, s41, 3\ns_lshl_b32 s50, s40, 8\ns_add_u32 s45, s45, s50\ns_lshl_b32 s50, s43, 1\ns_add_u32 s45, s45, s50")
            a("v_lshrrev_b32 v%d, 5, v0\nv_add_u32 v%d, s45, v%d\nv_lshlrev_b32 v%d, 11, v%d\nv_and_b32 v%d, 31, v0\nv_lshl_add_u32 v%d, v%d, 6, v%d" % (VT+6, VT+6, VT+6, VT+6, VT+6, VT+7, VT+6, VT+7, VT+6))
            a("s_mov_b32 exec_lo, 0x55555555\ns_mov_b32 exec_hi, 0x55555555")
            a("buffer_load_dword v%d, v%d, s[20:23], 0 offen\ns_mov_b64 exec, -1" % (VT+7, VT+6)); vm.add("t")
        for c in late[0]:
            if c == "1": sigma(1); xdma(1)
            if c == "2": sigma(2); xdma(2)
            if c == "t": ptouch()
            if c == "n": ldnonce(vm, VN, VZ)
            if c == "a": tload(vm, "s58", QB, SRB, "a1")
        stamp()
        vm.wait("x0")
        a("s_barrier")
        stamp()
        for c in late[1]:
            if c == "1": sigma(1); xdma(1)
            if c == "2": sigma(2); xdma(2)
            if c == "t": ptouch()
            if c == "n": ldnonce(vm, VN, VZ)
            if c == "a": tload(vm, "s58", QB, SRB, "a1")
        getnonce(vm, "L_pn", VN, VZ)
        sigma(2)
        a("s_mov_b32 s72, 0\ns_mov_b32 s73, %d" % late[2])
        a.label("L_pp")
        if stamps: a("s_add_u32 s90, s90, 1")
        fload(2)
        a("s_waitcnt lgkmcnt(0)\ns_cmp_eq_u64 s[64:65], s[52:53]\ns_cbranch_scc1 L_ppgo")
        a("s_sub_u32 s73, s73, 1\ns_cmp_lg_u32 s73, 0\ns_cbranch_scc1 L_pp\ns_branch L_ppno")
        a.label("L_ppgo")
        a("s_mov_b32 s72, 1\ns_add_u32 m0, s57, %d\ns_lshl_b32 s45, s70, 14" % (2*WS))
        for j in range(4): a("buffer_load_dwordx4 v%d, s[36:39], s45 offen offset:%d sc1 lds" % (VWD, j*1024))
        a("s_waitcnt vmcnt(4)\ns_branch L_ppd")
        a.label("L_ppno")
        a("s_waitcnt vmcnt(0)")
        a.label("L_ppd")
        vm.q = []
        stamp()
        for x in deq(QB, SRB, VS, VO): a(x)
        wlocal(1, VO)
        stamp()
        a("s_waitcnt lgkmcnt(0)")
        fload(2)
        a("s_barrier")
        stamp()
        a("s_cmp_lg_u32 s72, 0\ns_cbranch_scc1 L_skip2")
    else:
        if split: hload(vm, VQH, QB, SRB, "a1")
        elif not a1f: tload(vm, "s58", QB, SRB, "a1")
        sigma(1)
        x1p = opt.get("x1p", 1); x2p = opt.get("x2p", 1)
        if x1p == 0: xdma(1)
        stamp()
        for b, when in opt.get("stub", {}).items():
            if when == -1: a("s_call_b64 s[74:75], L_stub%d" % b)
        if opt.get("alc"): a("s_call_b64 s[74:75], L_ret")
        vm.wait("x0")
        a("s_barrier")
        stamp()
        ldnonce(vm, VN, VZ)
        if x1p == 1: xdma(1)
        sigma(2)
        if x2p == 0: xdma(2)
        vm.wait("a1")
        stamp()
        if not opt.get("nocb", True): lutwrite()
        w2 = opt.get("w2")
        if w2 is not None: getnonce(vm, "L_pn", VN, VZ)
        dq = deqh(QB, SRB, VS, VO) if split else deq(QB, SRB, VS, VO)
        if w2 is not None:
            k = [i for i, x in enumerate(dq) if x.startswith("s_waitcnt")][w2]
            dq = dq[:k+1] + ["s_lshl_b32 s45, s70, 3\ns_load_dwordx2 s[64:65], s[54:55], s45 glc"] + dq[k+1:]
        if x2p == 1:
            dq = interleave(dq, xdma_l(2), 4, 4 if split else 8, 1); vm.add("x2", 8)
        for x in dq: a(x)
        if split:
            for u in range(2): a("ds_write_b128 v%d, %s offset:%d" % (VWH, vr(VO+4*u, 4), 512*u))
        else: wlocal(1, VO)
        if x2p == 2: xdma(2)
        flp = opt.get("flp", 1)
        if not cw2 and flp == 0: fload(2)
        stamp()
        vm.wait("x1", extra="lgkmcnt(0)")
        if w2 is not None:
            a("s_mov_b32 s72, 0\ns_cmp_eq_u64 s[64:65], s[52:53]\ns_cbranch_scc0 L_w2late")
            a("s_mov_b32 s72, 1\ns_add_u32 m0, s57, %d\ns_lshl_b32 s45, s70, 14" % (2*WS))
            for j in range(4): a("buffer_load_dwordx4 v%d, s[36:39], s45 offen offset:%d sc1 lds" % (VWD, j*1024))
            a.label("L_w2late")
            if stamps: a("s_xor_b32 s45, s72, 1\ns_add_u32 s90, s90, s45")
        if e3: sigma(3); fload(3)
        elif not cw2 and flp == 1: fload(2)
        a("s_barrier")
        stamp()
        if x2p == 3: xdma(2)
    if split:
        for j in range(4): a("ds_read_b128 %s, v%d offset:%d" % (vr(VO+4*j, 4), VLR, WS + j*1024))
    if not late and opt.get("w2") is None: getnonce(vm, "L_pn", VN, VZ)
    if opt.get("w2") is not None: a("s_cmp_lg_u32 s72, 0\ns_cbranch_scc1 L_skip2")
    if cw2:
        a("s_lshl_b32 s45, s43, 2\nv_mov_b32 v%d, s45\nds_read_b32 v%d, v%d offset:64\ns_waitcnt lgkmcnt(0)\nv_readfirstlane_b32 s72, v%d\ns_mov_b64 s[64:65], 0\ns_nop 1" % (VT+4, VT+4, VT+4, VT+4))
        a("s_cmp_lg_u32 s72, 0\ns_cbranch_scc1 L_skip2")
        if stamps: a("s_add_u32 s90, s90, 1")
    if opt.get("padp"):
        a("s_branch L_padp\n.fill %d, 4, 0xbf800000" % opt["padp"]); a.label("L_padp")
    if not e3:
        wdma(2)
        if cw2: vm.q = vm.q[:-4]
        sigma(3); fload(3)
    for s in range(0, 14):
        i = s+3
        if stash and i == 15:
            a("s_cmp_lg_u32 s72, 0\ns_cbranch_scc1 L_skip15")
            wdma(15); vm.q = vm.q[:-4]
            vm.wait("sx")
            for j in range(8): a("ds_write_b128 v%d, %s offset:%d" % (VT+8, vr(160+4*j, 4), j*1024))
            a("s_cmp_eq_u32 s72, 0\ns_cbranch_scc1 L_nowst")
            for j in range(4): a("ds_write_b128 v%d, %s offset:%d" % (VLR, vr(208+4*j, 4), j*1024))
            a.label("L_nowst")
            vm.wait("x14", "w14")
            a("s_barrier")
            stamp()
            a("s_waitcnt vmcnt(0) lgkmcnt(0)\ns_barrier")
            stamp()
            break
        if g15 and i == 15:
            xl = xdma_l(15)
            for x in xl[:6]: a(x)
            vm.add("xa", 4)
            a("s_mov_b32 s72, 0")
            wdma(15, (3, 2))
            vm.q[-2:] = ["wa", "wb"]
            for x in xl[6:]: a(x)
            vm.add("xb", 4)
            a("s_cmp_eq_u32 s72, 0\ns_cbranch_scc1 L_g15\ns_add_u32 m0, s57, 0\ns_nop 0")
            for j in (1, 0): a("buffer_load_dwordx4 v%d, s[36:39], s45 offen offset:%d sc1 lds" % (VWD, j*1024))
            a("s_waitcnt vmcnt(12)\ns_barrier\ns_waitcnt vmcnt(7)\ns_barrier\ns_waitcnt vmcnt(2)\ns_barrier\ns_waitcnt vmcnt(0)\ns_barrier")
            a("s_branch L_g15e")
            a.label("L_g15")
            a("s_barrier\ns_barrier\ns_waitcnt vmcnt(0)\ns_barrier\ns_barrier")
            a.label("L_g15e")
            stamp()
            break
        if i <= 15:
            if e3 and i == 3 and opt.get("w3f", True): wdma(i); xdma(i)
            else: xdma(i); wdma(i)
            if i+1 <= 15: sigma(i+1); fload(i+1)
        if stash:
            assert max(stash) <= 10
            if s == min(stash)-1:
                a("s_cmp_le_u32 s40, 6\ns_cselect_b32 s73, 15, 14\ns_lshl_b32 s69, s73, 7\ns_lshl_b32 s73, s73, 14\nv_lshlrev_b32 v%d, 4, v0\nv_add_u32 v%d, s46, v%d" % (VT+8, VT+8, VT+8))
            for j in range(8):
                if stash[j] == s: a("buffer_load_dwordx4 %s, v%d, s[20:23], s69 offen offset:%d" % (vr(160+4*j, 4), VX+j, (j % 4)*1024)); vm.add("sx")
            if s == stash[8]-1: a("s_lshr_b32 s45, s69, 4\ns_load_dwordx2 s[76:77], s[54:55], s45 glc")
            if s == stash[8]: a("s_cmp_eq_u64 s[76:77], s[52:53]\ns_cselect_b32 s72, 1, 0")
            js = [j for j in range(4) if stash[8+j] == s]
            if js:
                a("s_cmp_eq_u32 s72, 0\ns_cbranch_scc1 L_now%d" % s)
                for j in js: a("buffer_load_dwordx4 %s, v%d, s[36:39], s73 offen offset:%d sc1" % (vr(208+4*j, 4), VWD, j*1024))
                a.label("L_now%d" % s)
        for b, when in opt.get("stub", {}).items():
            if when == s: a("s_call_b64 s[74:75], L_stub%d" % b)
        rp = opt.get("rp", {})
        if s in rp:
            a("s_lshl_b32 s45, s43, 11\nv_lshlrev_b32 v2, 7, v0\nv_add_u32 v2, s45, v2\nv_add_u32 v2, L_last-%s-%d, v2\nv_min_u32 v2, L_last-%s-4, v2" % (NAME, rp[s], NAME))
            a("s_mov_b64 exec, 0xffff\nglobal_load_dword v255, v2, s[18:19]\ns_mov_b64 exec, -1"); vm.add("pf")
        for j in range(4):
            if sp[j] == s:
                a("buffer_store_dwordx4 %s, v%d, s[36:39], 0 offen offset:%d sc1" % (vr(VO+4*j, 4), VP, j*1024 if split else JOFF[j])); vm.add("st")
        if s == sp[3]+1:
            vm.wait("x%d" % (s+2), "w%d" % (s+2), "st"); flag(vm, VN, VZ+1)
        else:
            vm.wait("x%d" % (s+2), "w%d" % (s+2))
        a("s_barrier")
        stamp()
    if stamps:
        a("s_cmp_lg_u32 s3, %d\ns_cbranch_scc1 L_end2" % opt.get("pw", 4))
        a("s_mov_b32 s38, 0x10000000")
        a("v_writelane_b32 v200, s90, 63")
        a("s_lshl_b32 s45, s2, 9\ns_add_u32 s45, s45, 0x8000000\nv_lshlrev_b32 v1, 2, v0\nv_add_u32 v1, s45, v1")
        a("buffer_store_dword v200, v1, s[36:39], 0 offen")
        a.label("L_end2")
    a("s_endpgm")
    a.label("L_ensure")
    a("s_mov_b32 s91, %d\ns_lshl_b32 s88, s86, 3" % npoll)
    a.label("L_poll")
    if stamps: a("s_add_u32 s90, s90, 1")
    a("s_load_dwordx2 s[92:93], s[54:55], s88 glc")
    a("s_waitcnt lgkmcnt(0)")
    a("s_cmp_eq_u64 s[92:93], s[52:53]\ns_cbranch_scc1 L_ret")
    a("s_sub_u32 s91, s91, 1\ns_cmp_lg_u32 s91, 0\ns_cbranch_scc1 L_poll")
    if stamps: a("s_lshl_b32 s45, 0x10000, s86\ns_or_b32 s90, s90, s45")
    FQ = 96; FSR = 128; FVS = 132; FVO = 136
    tload(None, "s86", FQ, FSR, "")
    a("v_add_u32 v%d, s87, v%d" % (VT+1, VW))
    a("s_waitcnt vmcnt(0)")
    for x in deq(FQ, FSR, FVS, FVO): a(x)
    for j in range(4): a("ds_write_b128 v%d, %s offset:%d" % (VT+1, vr(FVO+4*j, 4), JOFF[j]))
    a("s_waitcnt lgkmcnt(0)")
    a("s_cmp_lg_u32 s45, s45")
    a.label("L_ret")
    a("s_setpc_b64 s[74:75]")
    txt = a.text()
    p0, rest = txt.split("    @@CUT1@@\n"); p1_, p2 = rest.split("    @@CUT2@@\n")
    if opt.get("layout", 1): txt = p0 + "    s_branch L_cons2\n" + p2 + ("    .fill %d, 4, 0xbf800000\n" % opt["padc"] if opt.get("padc") else "") + ("    .p2align 12\n" if opt.get("alc") else "") + "L_cons2:\n" + p1_ + "L_last:\n"
    else: txt = p0 + p1_ + p2 + "L_last:\n"
    d = kernel_desc(NAME, 256, 96).replace(".end_amdhsa_kernel", "  .amdhsa_float_denorm_mode_32 3\n.end_amdhsa_kernel")
    return "; @launch grid=(256,1,1) block=(512,1,1) lds=%d\n" % LDS + HEADER + kernel_begin(NAME) + txt + d
P6 = dict(p1=[6, 7, 4, 5], fbp=2)
def G(txt): return ["B" if w == "B" else (13 + "abc".index(w[0]), int(w[1])) for w in txt.split()]
G3 = G("a6 a7 B a4 b6 b7 B a5 c6 c7 b4 B b5 c4 c5 a0 a1 B b0 b1 c0 c1 a2 a3 b2 b3 c2 c3")
G5 = G("a4 a5 B a6 b4 b5 B a7 b6 B b7 c4 c5 a0 a1 B b0 b1 c0 c1 a2 a3 b2 b3 c2 c3 c6 c7")
B = dict(rate=2, **P6)
AL = [1, 7, 13]
S1 = dict(al=AL, stub={1: -1, 7: -1, 13: -1}, **B)
S2 = dict(tmask=True, **S1)
ST = [5, 5, 6, 6, 7, 7, 8, 8, 9, 9, 10, 10]; STb = [5, 6, 6, 7, 8, 8, 9, 10, 6, 7, 9, 10]; STc = [8, 8, 8, 8, 9, 9, 9, 9, 10, 10, 10, 10]
H1 = G("a6 a7 B a4 B b6 b7 c6 c7 a5 b4 b5 c4 c5 a0 a1 b0 b1 c0 c1 a2 a3 b2 b3 c2 c3")
H2 = G("a6 a7 a4 B a5 B b6 b7 c6 c7 b4 b5 c4 c5 a0 a1 b0 b1 c0 c1 a2 a3 b2 b3 c2 c3")
H3 = G("a6 B a7 B a4 b6 b7 c6 c7 a5 b4 b5 c4 c5 a0 a1 b0 b1 c0 c1 a2 a3 b2 b3 c2 c3")
V = {"": S2, "_k": dict(stash=ST, **S2), "_k1": dict(stash=ST, g15=H1, **S2), "_k2": dict(stash=ST, g15=H2, **S2), "_k3": dict(stash=ST, g15=H3, **S2),
     "_k1b": dict(stash=STb, g15=H1, **S2), "_k1c": dict(stash=STc, g15=H1, **S2), "_fb": dict(npoll=1, stash=ST, g15=H1, **S2)}
if __name__ == "__main__":
    for k, v in V.items():
        open("ge%s.s" % k, "w").write(gen(v))
        o = dict(v); o["stamps"] = True
        open("ge_st%s.s" % k, "w").write(gen(o))
```

```python
import gene
HDR = """; Kernarg layout for this problem (56 bytes, ptrs only, base s[0:1]):
;
"""
s = gene.gen(gene.V[""])
open("../cdna_kernels/standalone__normalfloat_lut_codebook_lookup__prompt.s", "w").write(HDR + s)
open("final.s", "w").write(HDR + s)
o = dict(gene.V[""]); o["npoll"] = 1
open("final_fb.s", "w").write(gene.gen(o))
```

```python
import sys
from asmlib import *
NAME = "standalone__normalfloat_lut_codebook_lookup__prompt_kernel"
RB = 1024; XS = 32768; WB = RB + 3*XS; WS = 16384; LDS = WB + 3*WS
QROW = 14336
FL = 0x800000
WSZ = 0x804000
JOFF = [(j & 1)*512 + (j >> 1)*128 for j in range(4)]
def srd(a, d, lo, size):
    a("s_mov_b32 s%d, s%d\ns_mov_b32 s%d, s%d\ns_mov_b32 s%d, %d\ns_mov_b32 s%d, 0x20000" % (d, lo, d+1, lo+1, d+2, size, d+3))
class VM:
    def __init__(self, a): self.a = a; self.q = []
    def add(self, tag, n=1): self.q += [tag]*n
    def wait(self, *tags, extra=""):
        last = max([i for i, t in enumerate(self.q) if t in tags], default=-1)
        if last < 0:
            if extra: self.a("s_waitcnt %s" % extra)
            return
        n = len(self.q) - 1 - last
        assert n <= 63, n
        self.a("s_waitcnt vmcnt(%d) %s" % (n, extra))
        self.q = self.q[last+1:]
def _lut(Q, kp): return ["v_lshlrev_b32 v%d, 2, v%d" % (Q+8*kp+c, Q+8*kp+c) for c in range(8)] + ["ds_read_b32 v%d, v%d" % (Q+8*kp+c, Q+8*kp+c) for c in range(8)]
def _sc(SR, VS): return ["v_lshlrev_b32 v%d, 16, v%d" % (VS, SR), "v_and_b32 v%d, 0xffff0000, v%d" % (VS+1, SR),
                         "v_lshlrev_b32 v%d, 16, v%d" % (VS+2, SR+1), "v_and_b32 v%d, 0xffff0000, v%d" % (VS+3, SR+1)]
def _fin(Q, VS, kp, o): return (["v_mul_f32 v%d, v%d, v%d" % (Q+8*kp+c, Q+8*kp+c, VS+(c % 4)) for c in range(8)]
                                + ["v_cvt_pk_bf16_f32 v%d, v%d, v%d" % (o(j), Q+8*kp+j, Q+8*kp+4+j) for j in range(4)])
PT = 256
def deq2(Q, SR, VS, VO):
    def lut(kp):
        r = []
        for j in range(4): r += ["v_lshlrev_b32 v%d, 3, v%d" % (Q+8*kp+j, Q+8*kp+j)]
        for j in range(4): r += ["v_lshl_add_u32 v%d, v%d, 7, v%d" % (Q+8*kp+4+j, Q+8*kp+4+j, Q+8*kp+j)]
        for j in range(4): r += ["ds_read_b64 %s, v%d offset:%d" % (vr(Q+8*kp+2*j, 2), Q+8*kp+4+j, PT)]
        return r
    def fin(kp):
        r = ["v_mul_f32 v%d, v%d, v%d" % (Q+8*kp+c, Q+8*kp+c, VS+(c >> 1)) for c in range(8)]
        r += ["v_cvt_pk_bf16_f32 v%d, v%d, v%d" % (VO+4*j+kp, Q+8*kp+2*j, Q+8*kp+2*j+1) for j in range(4)]
        return r
    return (lut(0) + lut(1) + _sc(SR, VS) + lut(2) + lut(3) + ["s_waitcnt lgkmcnt(12)"] + fin(0) + ["s_waitcnt lgkmcnt(8)"] + fin(1)
            + ["s_waitcnt lgkmcnt(4)"] + fin(2) + ["s_waitcnt lgkmcnt(0)"] + fin(3))
def deq1(Q, SR, VS, VO):
    f = lambda kp: _fin(Q, VS, kp, lambda j: VO+4*j+kp)
    return (_lut(Q, 0) + _sc(SR, VS) + _lut(Q, 1) + ["s_waitcnt lgkmcnt(8)"] + f(0) + _lut(Q, 2) + ["s_waitcnt lgkmcnt(8)"] + f(1)
            + _lut(Q, 3) + ["s_waitcnt lgkmcnt(8)"] + f(2) + ["s_waitcnt lgkmcnt(0)"] + f(3))
def deqh(Q, SR, VS, VO):
    f = lambda kp: _fin(Q, VS, kp, lambda j: VO + 4*(j & 1) + 2*(j >> 1) + kp)
    sw = ["v_permlane32_swap_b32 v%d, v%d" % (VO+4*u+p, VO+4*u+2+p) for p in range(2) for u in range(2)]
    return _lut(Q, 0) + _lut(Q, 1) + _sc(SR, VS) + ["s_waitcnt lgkmcnt(8)"] + f(0) + ["s_waitcnt lgkmcnt(0)"] + f(1) + sw

def gen(opt={}):
    global RB, WB, LDS
    pair = opt.get("pair", False)
    RB = 4096 if pair else 1024; WB = RB + 3*XS; LDS = WB + 3*WS
    deq = deq2 if pair else deq1
    stamps = opt.get("stamps", False)
    npoll = opt.get("npoll", 40)
    split = opt.get("split", 0)
    cw2 = opt.get("cw2", 0)
    sp = opt.get("sp", [0, 1, 2, 3])
    e3 = opt.get("e3", 0)
    a = Asm()
    VQ = 10; VA = 11; VW = 12; VTAB = 13; VL4 = 14
    a("s_cmp_ge_u32 s2, 256\ns_cbranch_scc1 L_end")
    ds = opt.get("dsrd", True)
    if ds:
        a("s_load_dwordx2 s[24:25], s[0:1], 8\ns_load_dwordx2 s[28:29], s[0:1], 24\ns_load_dwordx2 s[32:33], s[0:1], 16\ns_load_dwordx2 s[20:21], s[0:1], 0")
        a("s_load_dwordx4 s[12:15], s[0:1], 32\ns_load_dwordx2 s[36:37], s[0:1], 48")
    else:
        a("s_load_dwordx8 s[4:11], s[0:1], 0")
        a("s_load_dwordx4 s[12:15], s[0:1], 32")
        a("s_load_dwordx2 s[16:17], s[0:1], 48")
    a("s_memrealtime s[60:61]")
    a("v_lshrrev_b32 v1, 6, v0\nv_and_b32 v0, 63, v0\nv_readfirstlane_b32 s3, v1")
    epf = opt.get("epf", True)
    if epf:
        a.label("L_pc")
        a("s_getpc_b64 s[18:19]\ns_sub_u32 s18, s18, L_pc+4-%s\ns_subb_u32 s19, s19, 0" % NAME)
        a("s_cmp_lt_u32 s3, 4\ns_cbranch_scc1 L_npf")
        a("v_lshlrev_b32 v2, 7, v0\ns_and_b32 s45, s3, 3\ns_lshl_b32 s45, s45, 13\nv_add_u32 v2, s45, v2")
        a("v_min_u32 v2, L_last-%s-4, v2" % NAME)
        a("global_load_dword v255, v2, s[18:19]")
        a.label("L_npf")
    a("s_and_b32 s44, s2, 1\ns_lshl_b32 s44, s44, 2\ns_bfe_u32 s40, s2, 0x20003\ns_add_u32 s40, s40, s44")
    a("s_bfe_u32 s41, s2, 0x20001\ns_lshl_b32 s41, s41, 3\ns_lshr_b32 s46, s2, 5\ns_add_u32 s41, s41, s46")
    a("s_and_b32 s42, s41, 1\ns_lshr_b32 s47, s41, 1\ns_and_b32 s43, s3, 3\ns_add_u32 s58, s40, 8")
    a("v_and_b32 v3, 31, v0\nv_lshrrev_b32 v4, 5, v0")
    a("s_lshl_b32 s45, s42, 7\nv_lshl_add_u32 v5, v3, 4, s45\nv_and_b32 v5, 511, v5")
    a("s_mul_i32 s46, s47, 896\ns_mul_i32 s57, s42, 384\ns_add_u32 s46, s46, s57")
    a("v_add_u32 v5, s46, v5\nv_lshrrev_b32 v%d, 1, v5" % VA)
    a("s_lshl_b32 s45, s43, 1\nv_add_u32 v6, s45, v4\nv_mul_u32_u24 v6, %d, v6\nv_add_u32 v%d, v5, v6" % (8*QROW, VQ))
    a("v_and_b32 v6, 15, v0\nv_lshlrev_b32 v6, 1, v6")
    if ds:
        for d, sz in ((24, 14680064), (28, 114688), (32, 32), (20, 4194304), (36, WSZ)): a("s_mov_b32 s%d, %d\ns_mov_b32 s%d, 0x20000" % (d+2, sz, d+3))
    a("s_mul_i32 s59, s40, 7168\ns_mul_i32 s56, s40, %d" % (64*QROW))
    a("s_cmp_ge_u32 s3, 4\ns_cbranch_scc1 L_prod")
    def tload(vm, sreg, Q, SR, tag):
        if sreg: a("s_mul_i32 s59, %s, 7168\ns_mul_i32 s56, %s, %d" % (sreg, sreg, 64*QROW))
        for kk in range(8):
            if kk: a("s_add_u32 s56, s56, %d" % QROW)
            a("buffer_load_dwordx4 %s, v%d, s[24:27], s56 offen" % (vr(Q+4*kk, 4), VQ))
        a("buffer_load_dwordx2 %s, v%d, s[28:31], s59 offen" % (vr(SR, 2), VA))
        if vm: vm.add(tag, 9)
    def hsetup(VQH, odd):
        a("s_mul_i32 s45, s43, %d\ns_add_u32 s45, s45, %d\nv_mul_u32_u24 v%d, %d, v4\nv_add3_u32 v%d, v%d, v5, s45" % (16*QROW, 8*QROW*odd, VQH, 4*QROW, VQH, VQH))
    def hload(vm, VQH, Q, SR, tag):
        a("s_mul_i32 s45, s58, 7168\ns_mul_i32 s56, s58, %d" % (64*QROW))
        a("buffer_load_dwordx2 %s, v%d, s[28:31], s45 offen" % (vr(SR, 2), VA))
        for kk in range(4):
            if kk: a("s_add_u32 s56, s56, %d" % QROW)
            a("buffer_load_dwordx4 %s, v%d, s[24:27], s56 offen" % (vr(Q+4*kk, 4), VQH))
        vm.add(tag, 5)
    def setup_pub(VP, VZ, sreg, lin=False, VWH=None, odd=0):
        a("v_lshrrev_b32 v7, 3, v3\nv_lshlrev_b32 v7, 10, v7\nv_and_b32 v8, 7, v3\nv_lshl_add_u32 v7, v8, 4, v7\nv_lshl_add_u32 v%d, v4, 8, v7" % VW)
        a("v_lshlrev_b32 v%d, 1, v6" % VL4)
        a("s_lshl_b32 s45, s41, 4\ns_add_u32 s45, s45, %s\ns_lshl_b32 s45, s45, 2\ns_add_u32 s45, s45, s43\ns_lshl_b32 s45, s45, 12" % sreg)
        if lin: a("v_lshlrev_b32 v%d, 4, v0\nv_add_u32 v%d, s45, v%d" % (VP, VP, VP))
        else: a("v_add_u32 v%d, s45, v%d" % (VP, VW))
        a("s_lshl_b32 s45, s41, 2\ns_add_u32 s45, s45, s43\ns_lshl_b32 s45, s45, 7\ns_add_u32 s45, s45, %d\ns_add_u32 s54, s36, s45\ns_addc_u32 s55, s37, 0" % FL)
        a("s_lshl_b32 s45, %s, 3\nv_mov_b32 v%d, s45\nv_mov_b32 v%d, 0" % (sreg, VZ+1, VZ))
        a("s_lshl_b32 s45, s43, 12\ns_add_u32 s57, s45, %d\nv_add_u32 v%d, s57, v%d" % (WB, VW, VW))
        if VWH: a("s_add_u32 s45, s57, %d\nv_lshl_add_u32 v%d, v4, 7, v7\nv_add_u32 v%d, s45, v%d" % (WS + 256*odd, VWH, VWH, VWH))
    def wlocal(slot, VO):
        for j in range(4): a("ds_write_b128 v%d, %s offset:%d" % (VW, vr(VO+4*j, 4), slot*WS + JOFF[j]))
    def flag(vm, VN, VF):
        a("s_mov_b64 exec, 1\nglobal_store_dwordx2 v%d, %s, s[54:55] sc1\ns_mov_b64 exec, -1" % (VF, vr(VN, 2)))
        vm.add("f")
    def ldnonce(vm, VN, VZ):
        a("global_load_dwordx2 %s, v%d, s[14:15] sc1" % (vr(VN, 2), VZ)); vm.add("n")
    def getnonce(vm, lab, VN, VZ, *tags):
        vm.wait("n", *tags)
        a("s_mov_b32 s45, %d" % (npoll+1))
        a.label(lab)
        a("v_readfirstlane_b32 s53, v%d\nv_readfirstlane_b32 s52, v%d\ns_nop 1\ns_cmp_lg_u32 s53, 0\ns_cbranch_scc1 %s_ok" % (VN+1, VN, lab))
        if stamps: a("s_add_u32 s90, s90, 0x100")
        a("global_load_dwordx2 %s, v%d, s[14:15] sc1" % (vr(VN, 2), VZ))
        a("s_waitcnt vmcnt(0)\ns_sub_u32 s45, s45, 1\ns_cmp_lg_u32 s45, 0\ns_cbranch_scc1 %s" % lab)
        a("s_mov_b32 s52, s60\ns_or_b32 s53, s61, 0x40000000\nv_mov_b32 v%d, s52\nv_mov_b32 v%d, s53" % (VN, VN+1))
        a.label(lab + "_ok")
    def lutwrite():
        a("v_lshlrev_b32 v%d, 16, v%d\nds_write_b32 v%d, v%d" % (VTAB, VTAB, VL4, VTAB))
    vm = VM(a)
    VXA = 2; VWA = 6; VOA = 7; ACC = 16
    QA = 16; SRA = 48; VSL = 52; VOT = 56; VP = 72; VR = 73; VZ = 224; VN = 226; VTC = 228
    VQH = 230; VWH = 231; QH = 232; SRH = 248
    a("s_waitcnt lgkmcnt(0)")
    if not ds: srd(a, 28, 10, 114688); srd(a, 24, 6, 14680064); srd(a, 32, 8, 32)
    scb = opt.get("scb", False) or pair
    if scb: a("s_load_dwordx8 s[4:11], s[32:33], 0")
    tload(vm, None, QA, SRA, "a0")
    if not scb: a("buffer_load_ushort v%d, v6, s[32:35], 0 offen" % VTAB); vm.add("a0")
    a("s_or_b32 s45, s2, s3\ns_cmp_lg_u32 s45, 0\ns_cbranch_scc1 L_nowr")
    a("s_or_b32 s61, s61, 0x40000000\nv_mov_b32 v126, s60\nv_mov_b32 v127, s61\nv_mov_b32 v15, 0")
    a("s_mov_b64 exec, 1\nglobal_store_dwordx2 v15, v[126:127], s[14:15] sc1\ns_mov_b64 exec, -1")
    a.label("L_nowr")
    a("@@CUT1@@")
    cs = [76]
    def cstamp():
        if stamps: a("s_memrealtime s[%d:%d]" % (cs[0], cs[0]+1)); cs[0] += 2
    if split: hsetup(VQH, 0)
    if split == 1: hload(vm, VQH, QH, SRH, "a1")
    if not ds: srd(a, 36, 16, WSZ)
    setup_pub(VP, VZ, "s40", False, VWH if split else None, 0)
    a("s_lshl_b32 s44, s40, 8\ns_lshl_b32 s45, s43, 6\ns_add_u32 s44, s44, s45")
    a("v_lshrrev_b32 v1, 4, v0\nv_and_b32 v%d, 15, v0" % VR)
    a("v_lshrrev_b32 v15, 1, v%d\nv_xor_b32 v15, v15, v1\nv_lshlrev_b32 v15, 4, v15\nv_lshl_add_u32 v15, v%d, 7, v15" % (VR, VR))
    a("s_lshl_b32 s45, s43, 13\ns_add_u32 s45, s45, %d\nv_add_u32 v%d, s45, v15\nv_xor_b32 v%d, 64, v%d" % (RB, VXA, VXA+1, VXA))
    a("v_add_u32 v%d, 0x10000, v%d\nv_add_u32 v%d, 0x10000, v%d" % (VXA+2, VXA, VXA+3, VXA+1))
    a("v_lshrrev_b32 v15, 1, v%d\nv_and_b32 v7, 1, v%d\nv_lshl_add_u32 v15, v7, 3, v15\nv_lshlrev_b32 v15, 4, v15" % (VR, VR))
    a("v_and_b32 v7, 1, v1\nv_lshl_add_u32 v15, v7, 8, v15\nv_lshrrev_b32 v7, 1, v1\nv_lshl_add_u32 v15, v7, 12, v15")
    a("v_add_u32 v%d, %d, v15" % (VWA, WB))
    a("v_lshlrev_b32 v15, 2, v1\nv_add_u32 v15, s44, v15\nv_mul_u32_u24 v15, 7168, v15\nv_lshl_add_u32 v15, v%d, 2, v15" % VR)
    a("s_mul_i32 s45, s47, 448\nv_add_u32 v15, s45, v15\nv_add_u32 v%d, 192, v15" % (VOA+1))
    a("s_lshl_b32 s45, s42, 8\nv_add_u32 v%d, s45, v15" % VOA)
    a("s_mul_i32 s48, s42, %d\ns_sub_u32 s49, %d, s48" % (32*7168, 32*7168))
    srd(a, 32, 12, 14680064)
    if not ds: srd(a, 20, 4, 4194304)
    a("s_lshl_b32 s45, s41, 3\ns_lshl_b32 s50, s40, 8\ns_add_u32 s45, s45, s50\ns_lshl_b32 s50, s43, 1\ns_add_u32 s45, s45, s50")
    a("v_lshrrev_b32 v%d, 5, v0\nv_add_u32 v%d, s45, v%d\nv_lshlrev_b32 v%d, 11, v%d\nv_and_b32 v15, 31, v0\nv_lshl_add_u32 v%d, v15, 6, v%d" % ((VTC,)*7))
    pt = opt.get("pt", "")
    if pt:
        a("s_mov_b64 exec, 1")
        if "w" in pt: a("buffer_load_dword v74, v%d, s[36:39], 0 offen" % VP); vm.add("pt")
        if "f" in pt: a("global_load_dword v74, v%d, s[54:55]" % VZ); vm.add("pt")
        if "d" in pt: a("global_load_dword v74, v%d, s[14:15] offset:128" % VZ); vm.add("pt")
        if "o" in pt: a("buffer_load_dword v74, v%d, s[32:35], 0 offen\ns_mov_b32 s45, %d\nbuffer_load_dword v74, v%d, s[32:35], s45 offen" % (VOA, 63*7168, VOA)); vm.add("pt", 2)
        a("s_mov_b64 exec, -1")
    tp = opt.get("touch", 0)
    def touch(pos):
        if pos == tp:
            if opt.get("tmask", False):
                a("s_lshl_b32 s45, s40, 1\ns_lshl_b32 s45, 0x10001, s45\ns_cmp_eq_u32 s40, 0\ns_cselect_b32 s50, 4, 1\ns_or_b32 s45, s45, s50\ns_andn2_b32 exec_lo, 0x55555555, s45\ns_mov_b32 exec_hi, exec_lo")
            else: a("s_mov_b32 exec_lo, 0x55555555\ns_mov_b32 exec_hi, 0x55555555")
            a("buffer_load_dword v%d, v%d, s[20:23], 0 offen" % (VTC+1, VTC))
            a("s_mov_b64 exec, -1"); vm.add("t")
    if scb:
        a("s_waitcnt lgkmcnt(0)")
        for i in range(8): a("v_writelane_b32 v%d, s%d, %d" % (VTAB, 4+i, i))
        a("v_lshlrev_b32 v74, 16, v%d\nv_and_b32 v75, 0xffff0000, v%d\nv_lshlrev_b32 v76, 3, v0" % (VTAB, VTAB))
        a("s_mov_b64 exec, 0xff\nds_write_b64 v76, v[74:75]\ns_mov_b64 exec, -1")
        if pair:
            a("v_lshlrev_b32 v77, 2, v1\nds_read_b32 v74, v%d" % VL4)
            for i in range(4): a("ds_read_b32 v%d, v77 offset:%d" % (81+2*i, 16*i))
            a("s_waitcnt lgkmcnt(0)")
            for i in range(4): a("v_mov_b32 v%d, v74" % (80+2*i))
            for i in range(4): a("ds_write_b64 v76, v[%d:%d] offset:%d" % (80+2*i, 81+2*i, PT + 512*i))
    for b, when in opt.get("stub", {}).items():
        if when == -2: a("s_call_b64 s[74:75], L_stub%d" % b)
    vm.wait("a0")
    cstamp()
    if not scb: lutwrite()
    for x in deq(QA, SRA, VSL, VOT): a(x)
    for j in range(4): a("buffer_store_dwordx4 %s, v%d, s[36:39], 0 offen offset:%d sc1" % (vr(VOT+4*j, 4), VP, JOFF[j]))
    vm.add("st", 4)
    if pt: vm.wait("pt")
    wlocal(0, VOT)
    ldnonce(vm, VN, VZ)
    if split == 2: hload(vm, VQH, QH, SRH, "a1")
    if e3 == 2: a("s_xor_b32 s51, s40, 1"); tload(vm, "s51", 160, 232, "b0")
    touch(-1)
    cstamp()
    accr = {}
    n = 0
    for t in range(8):
        for i in range(4 if t < 6 else 2):
            accr[(t, i)] = ACC + 4*n; n += 1
    def epi(gs):
        L = []
        for i in range(4):
            for e in range(4):
                g2 = [g for g in gs if g < 3 or i < 2]
                if not g2: continue
                L.append("s_add_u32 s45, s%d, %d" % (48 + (i >> 1), (16*(i & 1)+e)*7168))
                for g in g2:
                    r0 = accr[(2*g, i)]+e
                    L.append("v_cvt_pk_bf16_f32 v%d, v%d, v%d" % (r0, r0, accr[(2*g+1, i)]+e))
                for g in g2:
                    r0 = accr[(2*g, i)]+e
                    if g < 3: L.append("buffer_store_dword v%d, v%d, s[32:35], s45 offen offset:%d sc1" % (r0, VOA, 64*g))
                    else: L.append("buffer_store_dword v%d, v%d, s[32:35], s45 offen sc1" % (r0, VOA+1))
        return L
    a("s_waitcnt lgkmcnt(0)")
    a("s_barrier")
    ee = opt.get("ee", [[2, 3], [0], [1]])
    TS = opt.get("TS", [6, 7, 0, 1, 2, 3, 4, 5])
    XB = lambda st: 224 if st == 15 else 128 + 32*(st % 2)
    WR = lambda n: 192 + 8*(n % 4)
    LA = 3
    groups = [(st, t) for st in range(13) for t in TS]
    p1 = opt.get("p1", [4, 5, 6, 7])
    passes = [[(st, t) for st in (13, 14, 15) for t in (p1 if p == 0 else [2*g+u for g in gs for u in (0, 1)])] for p, gs in enumerate(ee)]
    pstart = []
    for P in passes: pstart.append(len(groups)); groups += P
    bpos = {8*st + 4: st for st in range(1, 13)}
    bpos[7] = 0
    fbp = opt.get("fbp", 1)
    bpos[pstart[0] + fbp] = 13; bpos[pstart[0] + len(p1) + fbp] = 14
    g15 = opt.get("g15")
    if g15:
        groups = groups[:pstart[0]]; bpos = {k: v for k, v in bpos.items() if v < 13}; nb = 13
        for e in g15:
            if e == "B": bpos[len(groups)-1] = nb; nb += 1
            else: groups.append(e)
        assert nb == 17 and sorted(groups[104:]) == sorted((st, t) for st in (13, 14, 15) for t in range(8))
    lev = lambda st, t: st if (st < 15 or not g15) else (15 if t >= 6 else 16 if t >= 4 else 17)
    lq = []
    def lwait(tags):
        last = max([i for i, t in enumerate(lq) if t in tags], default=-1)
        if last < 0: return
        a("s_waitcnt lgkmcnt(%d)" % min(15, len(lq)-1-last))
        del lq[:last+1]
    def rW(n):
        st, t = groups[n]
        return [("W%d" % n, "ds_read_b128 %s, v%d offset:%d" % (vr(WR(n)+4*ks, 4), VWA, (st % 3)*WS + ks*8192 + t*512)) for ks in range(2)]
    def rX(st):
        sg = st % 3
        return [("X%d_%d" % (st, i), "ds_read_b128 %s, v%d offset:%d" % (vr(XB(st)+8*i+4*ks, 4), VXA+2*(sg//2)+ks, (sg % 2)*XS + i*2048)) for i in range(4) for ks in range(2)]
    done = set(); sq = []; cred = [0]; age = [99]; newest = [-1]
    pub = 0; nW = 0; xq = []; xdone = -1; flip = [0]; seen = set(); pend = []; snake = [0]
    def issue_now(L):
        for tag, ins in L: a(ins); lq.append(tag)
    def avail(n):
        nonlocal nW
        L = []
        while nW < len(groups) and nW <= n + LA and lev(*groups[nW]) <= pub:
            L += rW(nW); nW += 1
        return L
    issue_now(rW(0) + rX(0)[:4]); nW = 1; issue_now(rX(0)[4:] + avail(-1)); xdone = 0
    for n, (st, t) in enumerate(groups):
        ii = list(range(4 if t < 6 else 2))
        if snake[0]: ii.reverse()
        snake[0] ^= 1
        lwait(["W%d" % n] + ["X%d_%d" % (st, i) for i in ii])
        m = []
        for i in ii:
            d = accr[(t, i)]
            for c in ((0, 1) if not flip[0] else (1, 0)):
                first = (t, i) not in seen; seen.add((t, i))
                m.append("v_mfma_f32_16x16x32_bf16 %s, %s, %s, %s" % (vr(d, 4), vr(XB(st)+8*i+4*c, 4), vr(WR(n)+4*c, 4), "0" if first else vr(d, 4)))
            flip[0] ^= 1
        rd = avail(n)
        if xdone < pub:
            xq = rX(pub) if pub < 15 or not g15 else rX(15)[:4] if pub == 15 else rX(15)[4:] if pub == 16 else []
            xdone = pub
        nxt_first = min([k for k in range(n+1, len(groups)) if groups[k][0] > st] + [len(groups)])
        if g15 and pub >= 15: nxt_first = n+1
        if xq:
            left = max(1, nxt_first - n - 1)
            take = len(xq) if nxt_first - n <= 1 else min(len(xq), max(4, (len(xq) + left - 1)//left))
            rd += xq[:take]; xq = xq[take:]
        for tag, ins in rd: lq.append(tag)
        body = interleave(m, [ins for tag, ins in rd], 0, 1, 1 if len(rd) <= len(m) else 2)
        rate = opt.get("rate")
        if rate:
            out = []
            for x in body:
                out.append(x); age[0] += 1
                if x.startswith("v_mfma"):
                    cred[0] += 1
                    if sq and cred[0] >= rate and (sq[0][0] != newest[0] or age[0] >= 9):
                        out += sq.pop(0)[1]; cred[0] -= rate
                        if cred[0] > rate: cred[0] = rate
            body = out
            done.add((st, t))
            if n+1 < len(groups) and all((s_, t_) in done for s_ in (13, 14, 15) for t_ in (t & ~1, t | 1)) and st >= 13:
                L = epi([t//2]); newest[0] = t//2; age[0] = 0
                if not sq: cred[0] = rate
                sq += [(t//2, L[k:k+3]) for k in range(0, len(L), 3)]
        else:
            for p in range(1, len(passes)):
                if n == pstart[p] + 1: pend = epi(ee[p-1]); pleft = len(passes[p]) - 1
            if pend:
                take = (len(pend) + pleft - 1)//pleft; pleft -= 1
                part, pend = pend[:take], pend[take:]
                body = interleave(body, part, 0, 1, 1 if len(part) <= len(body) else 2)
        for x in body: a(x)
        if n in bpos:
            b = bpos[n]
            if b == 0:
                getnonce(vm, "L_cn", VN, VZ, "st")
                flag(vm, VN, VZ+1)
                cstamp()
                touch(0)
                for b_, when in opt.get("stub", {}).items():
                    if when == -3: a("s_call_b64 s[74:75], L_stub%d" % b_)
                if e3:
                    if e3 == 1: a("s_xor_b32 s51, s40, 1"); tload(vm, "s51", 160, 232, "b0")
                    touch(4)
                    vm.wait("b0")
                    for x in deq(160, 232, 234, 240): a(x)
                    wlocal(2, 240)
                    a("s_waitcnt lgkmcnt(0)")
                if split:
                    vm.wait("a1")
                    for x in deqh(QH, SRH, 160, 164): a(x)
                    for u in range(2): a("ds_write_b128 v%d, %s offset:%d" % (VWH, vr(164+4*u, 4), 512*u))
                    a("s_waitcnt lgkmcnt(0)")
                cstamp()
                touch(1)
                if cw2:
                    a("s_cmp_le_u32 s40, 0\ns_cselect_b32 s70, 1, 0\ns_lshl_b32 s71, s70, 3\ns_mov_b32 s72, %d\nv_mov_b32 v161, 0" % cw2)
                    a("s_lshl_b32 s45, s41, 18\ns_lshl_b32 s73, s43, 12\ns_add_u32 s45, s45, s73\nv_lshlrev_b32 v160, 4, v0\nv_add_u32 v160, s45, v160")
                    a.label("L_cpoll")
                    a("s_load_dwordx2 s[64:65], s[54:55], s71 glc\ns_waitcnt lgkmcnt(0)\ns_cmp_eq_u64 s[64:65], s[52:53]\ns_cbranch_scc1 L_cgo")
                    a("s_sub_u32 s72, s72, 1\ns_cmp_lg_u32 s72, 0\ns_cbranch_scc1 L_cpoll\ns_branch L_cno")
                    a.label("L_cgo")
                    a("s_add_u32 m0, s57, %d\ns_lshl_b32 s45, s70, 14\nv_mov_b32 v161, 1" % (2*WS))
                    for j in range(4): a("buffer_load_dwordx4 v160, s[36:39], s45 offen offset:%d sc1 lds" % (j*1024))
                    a.label("L_cno")
                    a("s_lshl_b32 s45, s43, 2\nv_mov_b32 v162, s45\nds_write_b32 v162, v161 offset:64\ns_waitcnt lgkmcnt(0)")
                touch(2)
            if b == 1 and cw2: a("s_waitcnt vmcnt(%d)" % (1 if tp == 2 else 0))
            if b == 11: a("s_waitcnt vmcnt(0)")
            if b in opt.get("al", []):
                a("s_branch L_fin%d\n.p2align 12" % b)
                if opt.get("stub"):
                    a.label("L_stub%d" % b); a("s_setpc_b64 s[74:75]\ns_nop 0")
                a.label("L_fin%d" % b)
            if lq: a("s_waitcnt lgkmcnt(0)"); del lq[:]
            a("s_barrier")
            pub = b+1
            if b == 0:
                cstamp()
                touch(3)
                W1 = avail(n); X1 = rX(1); xdone = 1
                issue_now(W1[:2] + X1 + W1[2:])
    if stamps: a("s_memrealtime s[62:63]")
    for g, L in sq:
        for x in L: a(x)
    if len(sq) < 3: a("s_nop 7")
    for x in epi([groups[-1][1]//2] if opt.get("rate") else ee[-1]): a(x)
    if stamps:
        a("s_memrealtime s[64:65]\ns_waitcnt vmcnt(0)\ns_memrealtime s[66:67]\ns_waitcnt lgkmcnt(0)")
        a("s_cmp_lg_u32 s3, 0\ns_cbranch_scc1 L_end")
        a("s_mov_b32 s38, 0x10000000")
        a("v_mov_b32 v2, s62\nv_mov_b32 v3, s64\nv_mov_b32 v4, s66\nv_mov_b32 v5, s76\nv_mov_b32 v6, s78\nv_mov_b32 v7, s80\nv_mov_b32 v8, s82\nv_mov_b32 v9, s84")
        a("s_lshl_b32 s45, s2, 9\ns_add_u32 s45, s45, 0x8000100\nv_mov_b32 v1, s45")
        a("s_mov_b64 exec, 1")
        a("buffer_store_dwordx4 v[2:5], v1, s[36:39], 0 offen")
        a("buffer_store_dwordx4 v[6:9], v1, s[36:39], 0 offen offset:16")
    a.label("L_end")
    a("s_endpgm")
    a("@@CUT2@@")
    a.label("L_prod")
    vm = VM(a)
    VX = 16; VT = 240; VWD = 15; VQH = 24; VWH = 25; VLR = 26
    QB = 32; SRB = 64; VS = 68; VO = 72; VP = 88; VZ = 90; VN = 92
    nst = [1]
    def stamp():
        if stamps:
            a("s_memrealtime s[62:63]\ns_memtime s[94:95]\ns_waitcnt lgkmcnt(0)\nv_writelane_b32 v200, s62, %d\nv_writelane_b32 v200, s94, %d" % (nst[0], 32+nst[0])); nst[0] += 1
    if not epf:
        a.label("L_pc")
        a("s_getpc_b64 s[18:19]\ns_sub_u32 s18, s18, L_pc+4-%s\ns_subb_u32 s19, s19, 0" % NAME)
        a("v_lshlrev_b32 v2, 7, v0\ns_lshl_b32 s45, s43, 13\nv_add_u32 v2, s45, v2")
        a("v_min_u32 v2, L_last-%s-4, v2" % NAME)
        a("global_load_dword v255, v2, s[18:19]")
    vm.add("pf")
    a("s_lshl_b32 s44, s40, 8\ns_lshl_b32 s45, s43, 6\ns_add_u32 s44, s44, s45")
    a("v_lshrrev_b32 v1, 4, v0")
    a("v_lshrrev_b32 v%d, 3, v0\ns_lshl_b32 s45, s42, 5\nv_xor_b32 v%d, s45, v%d\nv_add_u32 v%d, s44, v%d\nv_lshlrev_b32 v%d, 11, v%d" % ((VT,)*7))
    a("v_and_b32 v%d, 7, v0\nv_xor_b32 v%d, v%d, v1\nv_lshl_add_u32 v%d, v%d, 4, v%d" % (VT+1, VT+1, VT+1, VX, VT+1, VT))
    a("v_xor_b32 v%d, 64, v%d\nv_add_u32 v%d, %d, v%d" % (VX+1, VX, VX+1, 16384-1024, VX+1))
    for j in (2, 3): a("v_add_u32 v%d, %d, v%d" % (VX+j, 2*(16384-1024), VX+j-2))
    a("s_mul_i32 s45, s42, %d\ns_sub_u32 s45, %d, s45" % (2*65536, 65536))
    for j in range(4, 8): a("v_add_u32 v%d, s45, v%d" % (VX+j, VX+j-4))
    a("s_lshl_b32 s46, s43, 13\ns_add_u32 s46, s46, %d" % RB)
    if split: hsetup(VQH, 1)
    a("s_waitcnt lgkmcnt(0)")
    if stamps: a("v_mov_b32 v200, 0\ns_mov_b32 s90, 0\ns_nop 1\nv_writelane_b32 v200, s60, 0")
    if not ds: srd(a, 20, 4, 4194304); srd(a, 24, 6, 14680064); srd(a, 28, 10, 114688); srd(a, 32, 8, 32)
    SG = [70, 71]
    a("s_and_b32 s51, s40, 6")
    def sigma(i):
        d = "s%d" % SG[i % 2]
        if i == 0: a("s_mov_b32 %s, s40" % d)
        elif i == 1: a("s_mov_b32 %s, s58" % d)
        elif e3 and i == 2: a("s_xor_b32 %s, s40, 1" % d)
        elif e3 and i < 9: a("s_cmp_le_u32 s51, %d\ns_cselect_b32 %s, %d, %d" % (i-3, d, i-1, i-3))
        else:
            ii, base = (i-2, 0) if i < 9 else (i-9, 8)
            a("s_cmp_le_u32 s40, %d\ns_cselect_b32 %s, %d, %d" % (ii, d, base+ii+1, base+ii))
    def xdma_l(i):
        L = ["s_lshl_b32 s50, s%d, 7" % SG[i % 2]]
        for j in range(8):
            if j % 4 == 0: L.append("s_add_u32 m0, s46, %d\ns_nop 0" % ((i % 3)*XS + j*1024))
            L.append("buffer_load_dwordx4 v%d, s[20:23], s50 offen offset:%d lds" % (VX+j, (j % 4)*1024))
        return L
    def xdma(i):
        for x in xdma_l(i): a(x)
        vm.add("x%d" % i, 8)
    def fload(i):
        a("s_lshl_b32 s45, s%d, 3\ns_load_dwordx2 s[%d:%d], s[54:55], s45 glc" % (SG[i % 2], 64+2*(i % 2), 65+2*(i % 2)))
    def wdma(i, js=(0, 1, 2, 3)):
        F = 64 + 2*(i % 2)
        a("s_waitcnt lgkmcnt(0)")
        a("s_cmp_eq_u64 s[%d:%d], s[52:53]\ns_cbranch_scc1 L_rdy%d" % (F, F+1, i))
        a("s_mov_b32 s86, s%d\ns_mov_b32 s87, %d\ns_call_b64 s[74:75], L_ensure\ns_cbranch_scc0 L_skip%d" % (SG[i % 2], (i % 3)*WS, i))
        a.label("L_rdy%d" % i)
        a("s_add_u32 m0, s57, %d\ns_lshl_b32 s45, s%d, 14" % ((i % 3)*WS, SG[i % 2]))
        if len(js) < 4: a("s_mov_b32 s72, 1")
        for j in js: a("buffer_load_dwordx4 v%d, s[36:39], s45 offen offset:%d sc1 lds" % (VWD, j*1024))
        a.label("L_skip%d" % i)
        vm.add("w%d" % i, len(js))
    stamp()
    a1f = opt.get("a1f", False)
    if a1f: tload(vm, "s58", QB, SRB, "a1")
    sigma(0); xdma(0)
    if not opt.get("nocb", True): a("buffer_load_ushort v%d, v6, s[32:35], 0 offen" % VTAB); vm.add("a1")
    if not ds: srd(a, 36, 16, WSZ)
    setup_pub(VP, VZ, "s58", bool(split), VWH if split else None, 1)
    a("s_lshl_b32 s45, s41, 18\ns_lshl_b32 s50, s43, 12\ns_add_u32 s45, s45, s50\nv_lshlrev_b32 v%d, 4, v0\nv_add_u32 v%d, s57, v%d\nv_add_u32 v%d, s45, v%d" % (VWD, VLR, VWD, VWD, VWD))
    late = opt.get("late")
    if late:
        def ptouch():
            a("s_lshl_b32 s45, s41, 3\ns_lshl_b32 s50, s40, 8\ns_add_u32 s45, s45, s50\ns_lshl_b32 s50, s43, 1\ns_add_u32 s45, s45, s50")
            a("v_lshrrev_b32 v%d, 5, v0\nv_add_u32 v%d, s45, v%d\nv_lshlrev_b32 v%d, 11, v%d\nv_and_b32 v%d, 31, v0\nv_lshl_add_u32 v%d, v%d, 6, v%d" % (VT+6, VT+6, VT+6, VT+6, VT+6, VT+7, VT+6, VT+7, VT+6))
            a("s_mov_b32 exec_lo, 0x55555555\ns_mov_b32 exec_hi, 0x55555555")
            a("buffer_load_dword v%d, v%d, s[20:23], 0 offen\ns_mov_b64 exec, -1" % (VT+7, VT+6)); vm.add("t")
        for c in late[0]:
            if c == "1": sigma(1); xdma(1)
            if c == "2": sigma(2); xdma(2)
            if c == "t": ptouch()
            if c == "n": ldnonce(vm, VN, VZ)
            if c == "a": tload(vm, "s58", QB, SRB, "a1")
        stamp()
        vm.wait("x0")
        a("s_barrier")
        stamp()
        for c in late[1]:
            if c == "1": sigma(1); xdma(1)
            if c == "2": sigma(2); xdma(2)
            if c == "t": ptouch()
            if c == "n": ldnonce(vm, VN, VZ)
            if c == "a": tload(vm, "s58", QB, SRB, "a1")
        getnonce(vm, "L_pn", VN, VZ)
        sigma(2)
        a("s_mov_b32 s72, 0\ns_mov_b32 s73, %d" % late[2])
        a.label("L_pp")
        if stamps: a("s_add_u32 s90, s90, 1")
        fload(2)
        a("s_waitcnt lgkmcnt(0)\ns_cmp_eq_u64 s[64:65], s[52:53]\ns_cbranch_scc1 L_ppgo")
        a("s_sub_u32 s73, s73, 1\ns_cmp_lg_u32 s73, 0\ns_cbranch_scc1 L_pp\ns_branch L_ppno")
        a.label("L_ppgo")
        a("s_mov_b32 s72, 1\ns_add_u32 m0, s57, %d\ns_lshl_b32 s45, s70, 14" % (2*WS))
        for j in range(4): a("buffer_load_dwordx4 v%d, s[36:39], s45 offen offset:%d sc1 lds" % (VWD, j*1024))
        a("s_waitcnt vmcnt(4)\ns_branch L_ppd")
        a.label("L_ppno")
        a("s_waitcnt vmcnt(0)")
        a.label("L_ppd")
        vm.q = []
        stamp()
        for x in deq(QB, SRB, VS, VO): a(x)
        wlocal(1, VO)
        stamp()
        a("s_waitcnt lgkmcnt(0)")
        fload(2)
        a("s_barrier")
        stamp()
        a("s_cmp_lg_u32 s72, 0\ns_cbranch_scc1 L_skip2")
    else:
        if split: hload(vm, VQH, QB, SRB, "a1")
        elif not a1f: tload(vm, "s58", QB, SRB, "a1")
        sigma(1)
        x1p = opt.get("x1p", 1); x2p = opt.get("x2p", 1)
        if x1p == 0: xdma(1)
        stamp()
        for b, when in opt.get("stub", {}).items():
            if when == -1: a("s_call_b64 s[74:75], L_stub%d" % b)
        if opt.get("alc"): a("s_call_b64 s[74:75], L_ret")
        vm.wait("x0")
        a("s_barrier")
        stamp()
        ldnonce(vm, VN, VZ)
        if x1p == 1: xdma(1)
        sigma(2)
        if x2p == 0: xdma(2)
        vm.wait("a1")
        stamp()
        if not opt.get("nocb", True): lutwrite()
        dq = deqh(QB, SRB, VS, VO) if split else deq(QB, SRB, VS, VO)
        if x2p == 1:
            dq = interleave(dq, xdma_l(2), 4, 4 if split else 8, 1); vm.add("x2", 8)
        for x in dq: a(x)
        if split:
            for u in range(2): a("ds_write_b128 v%d, %s offset:%d" % (VWH, vr(VO+4*u, 4), 512*u))
        else: wlocal(1, VO)
        if x2p == 2: xdma(2)
        flp = opt.get("flp", 1)
        if not cw2 and flp == 0: fload(2)
        stamp()
        vm.wait("x1", extra="lgkmcnt(0)")
        if e3: sigma(3); fload(3)
        elif not cw2 and flp == 1: fload(2)
        a("s_barrier")
        stamp()
        if x2p == 3: xdma(2)
    if split:
        for j in range(4): a("ds_read_b128 %s, v%d offset:%d" % (vr(VO+4*j, 4), VLR, WS + j*1024))
    if not late: getnonce(vm, "L_pn", VN, VZ)
    if cw2:
        a("s_lshl_b32 s45, s43, 2\nv_mov_b32 v%d, s45\nds_read_b32 v%d, v%d offset:64\ns_waitcnt lgkmcnt(0)\nv_readfirstlane_b32 s72, v%d\ns_mov_b64 s[64:65], 0\ns_nop 1" % (VT+4, VT+4, VT+4, VT+4))
        a("s_cmp_lg_u32 s72, 0\ns_cbranch_scc1 L_skip2")
        if stamps: a("s_add_u32 s90, s90, 1")
    if opt.get("padp"):
        a("s_branch L_padp\n.fill %d, 4, 0xbf800000" % opt["padp"]); a.label("L_padp")
    if not e3:
        wdma(2)
        if cw2: vm.q = vm.q[:-4]
        sigma(3); fload(3)
    for s in range(0, 14):
        i = s+3
        if g15 and i == 15:
            xl = xdma_l(15)
            for x in xl[:6]: a(x)
            vm.add("xa", 4)
            a("s_mov_b32 s72, 0")
            wdma(15, (3, 2))
            vm.q[-2:] = ["wa", "wb"]
            for x in xl[6:]: a(x)
            vm.add("xb", 4)
            a("s_cmp_eq_u32 s72, 0\ns_cbranch_scc1 L_g15\ns_add_u32 m0, s57, 0\ns_nop 0")
            for j in (1, 0): a("buffer_load_dwordx4 v%d, s[36:39], s45 offen offset:%d sc1 lds" % (VWD, j*1024))
            a("s_waitcnt vmcnt(12)\ns_barrier\ns_waitcnt vmcnt(7)\ns_barrier\ns_waitcnt vmcnt(2)\ns_barrier\ns_waitcnt vmcnt(0)\ns_barrier")
            a("s_branch L_g15e")
            a.label("L_g15")
            a("s_barrier\ns_barrier\ns_waitcnt vmcnt(0)\ns_barrier\ns_barrier")
            a.label("L_g15e")
            stamp()
            break
        if i <= 15:
            if e3 and i == 3 and opt.get("w3f", True): wdma(i); xdma(i)
            else: xdma(i); wdma(i)
            if i+1 <= 15: sigma(i+1); fload(i+1)
        for b, when in opt.get("stub", {}).items():
            if when == s: a("s_call_b64 s[74:75], L_stub%d" % b)
        rp = opt.get("rp", {})
        if s in rp:
            a("s_lshl_b32 s45, s43, 11\nv_lshlrev_b32 v2, 7, v0\nv_add_u32 v2, s45, v2\nv_add_u32 v2, L_last-%s-%d, v2\nv_min_u32 v2, L_last-%s-4, v2" % (NAME, rp[s], NAME))
            a("s_mov_b64 exec, 0xffff\nglobal_load_dword v255, v2, s[18:19]\ns_mov_b64 exec, -1"); vm.add("pf")
        for j in range(4):
            if sp[j] == s:
                a("buffer_store_dwordx4 %s, v%d, s[36:39], 0 offen offset:%d sc1" % (vr(VO+4*j, 4), VP, j*1024 if split else JOFF[j])); vm.add("st")
        if s == sp[3]+1:
            vm.wait("x%d" % (s+2), "w%d" % (s+2), "st"); flag(vm, VN, VZ+1)
        else:
            vm.wait("x%d" % (s+2), "w%d" % (s+2))
        a("s_barrier")
        stamp()
    if stamps:
        a("s_cmp_lg_u32 s3, %d\ns_cbranch_scc1 L_end2" % opt.get("pw", 4))
        a("s_mov_b32 s38, 0x10000000")
        a("v_writelane_b32 v200, s90, 63")
        a("s_lshl_b32 s45, s2, 9\ns_add_u32 s45, s45, 0x8000000\nv_lshlrev_b32 v1, 2, v0\nv_add_u32 v1, s45, v1")
        a("buffer_store_dword v200, v1, s[36:39], 0 offen")
        a.label("L_end2")
    a("s_endpgm")
    a.label("L_ensure")
    a("s_mov_b32 s91, %d\ns_lshl_b32 s88, s86, 3" % npoll)
    a.label("L_poll")
    if stamps: a("s_add_u32 s90, s90, 1")
    a("s_load_dwordx2 s[92:93], s[54:55], s88 glc")
    a("s_waitcnt lgkmcnt(0)")
    a("s_cmp_eq_u64 s[92:93], s[52:53]\ns_cbranch_scc1 L_ret")
    a("s_sub_u32 s91, s91, 1\ns_cmp_lg_u32 s91, 0\ns_cbranch_scc1 L_poll")
    if stamps: a("s_lshl_b32 s45, 0x10000, s86\ns_or_b32 s90, s90, s45")
    FQ = 96; FSR = 128; FVS = 132; FVO = 136
    tload(None, "s86", FQ, FSR, "")
    a("v_add_u32 v%d, s87, v%d" % (VT+1, VW))
    a("s_waitcnt vmcnt(0)")
    for x in deq(FQ, FSR, FVS, FVO): a(x)
    for j in range(4): a("ds_write_b128 v%d, %s offset:%d" % (VT+1, vr(FVO+4*j, 4), JOFF[j]))
    a("s_waitcnt lgkmcnt(0)")
    a("s_cmp_lg_u32 s45, s45")
    a.label("L_ret")
    a("s_setpc_b64 s[74:75]")
    txt = a.text()
    p0, rest = txt.split("    @@CUT1@@\n"); p1_, p2 = rest.split("    @@CUT2@@\n")
    if opt.get("layout", 1): txt = p0 + "    s_branch L_cons2\n" + p2 + ("    .fill %d, 4, 0xbf800000\n" % opt["padc"] if opt.get("padc") else "") + ("    .p2align 12\n" if opt.get("alc") else "") + "L_cons2:\n" + p1_ + "L_last:\n"
    else: txt = p0 + p1_ + p2 + "L_last:\n"
    d = kernel_desc(NAME, 256, 96).replace(".end_amdhsa_kernel", "  .amdhsa_float_denorm_mode_32 3\n.end_amdhsa_kernel")
    return "; @launch grid=(256,1,1) block=(512,1,1) lds=%d\n" % LDS + HEADER + kernel_begin(NAME) + txt + d
P6 = dict(p1=[6, 7, 4, 5], fbp=2)
def G(txt): return ["B" if w == "B" else (13 + "abc".index(w[0]), int(w[1])) for w in txt.split()]
G3 = G("a6 a7 B a4 b6 b7 B a5 c6 c7 b4 B b5 c4 c5 a0 a1 B b0 b1 c0 c1 a2 a3 b2 b3 c2 c3")
G5 = G("a4 a5 B a6 b4 b5 B a7 b6 B b7 c4 c5 a0 a1 B b0 b1 c0 c1 a2 a3 b2 b3 c2 c3 c6 c7")
B = dict(rate=2, **P6)
AL = [1, 7, 13]
S1 = dict(al=AL, stub={1: -1, 7: -1, 13: -1}, **B)
V = {"": S1, "_c": dict(alc=True, **S1), "_old": B, "_fb": dict(npoll=1, alc=True, **S1)}
if __name__ == "__main__":
    for k, v in V.items():
        open("ge%s.s" % k, "w").write(gen(v))
        o = dict(v); o["stamps"] = True
        open("ge_st%s.s" % k, "w").write(gen(o))
```
